```python
import torch

def _softmax(x, axis=-1):
    return torch.softmax(x, dim=axis)
def _gelu(x):
    return torch.nn.functional.gelu(x, approximate="tanh")
def _silu(x):
    return torch.nn.functional.silu(x)
def _sigmoid(x):
    return torch.sigmoid(x)
def _layernorm(x, axis=-1, eps=1e-5):
    m = x.mean(dim=axis, keepdim=True)
    v = x.var(dim=axis, keepdim=True, unbiased=False)
    return (x - m) / torch.sqrt(v + eps)
def _scatter_add(tgt, idx, src, axis=0):
    return tgt.clone().index_add_(axis, idx, src)
def _segment_sum(src, seg, n):
    out = torch.zeros((n,) + src.shape[1:], dtype=src.dtype)
    return out.index_add_(0, seg, src)
def _pad(x, pw):
    flat = tuple(v for pair in reversed(pw) for v in pair)
    return torch.nn.functional.pad(x, flat)

kernel_name = 'recurrent_scan__compressed_kv_cla__dense_activation_gelu__prompt'

def setup_inputs():

    _w = (lambda a: (lambda t: t.to(torch.bfloat16) if t.is_floating_point() else t)(torch.as_tensor(a)))
    def _A_setup():
        B, H, Sq, Sk, D, M = 1, 32, 2048, 2048, 128, 512
        Dc = 4 * D
        return {
            "x": _w((lambda *s: torch.randn(*s, dtype=torch.bfloat16) * 0.05)(B, Sq, M)),
            "c_kv": _w((lambda *s: torch.randn(*s, dtype=torch.bfloat16) * 0.8)(B, Sk, Dc)),
            "w_q": _w((lambda *s: torch.randn(*s, dtype=torch.bfloat16) * 1.6)(M, H, D) * (M ** -0.5)),
            "w_uk": _w((lambda *s: torch.randn(*s, dtype=torch.bfloat16) * 1.6)(Dc, H, D) * (Dc ** -0.5)),
            "w_uv": _w((lambda *s: torch.randn(*s, dtype=torch.bfloat16) * 0.8)(Dc, H, D) * (Dc ** -0.5)),
            "w_o": _w((lambda *s: torch.randn(*s, dtype=torch.bfloat16) * 0.8)(H, D, M) * ((H * D) ** -0.5)),
        }
    _A_in = _A_setup()

    def _B_setup():
        B, S, D, F = 1, 2048, 512, 1376
        return {
            "x": _w((lambda *s: torch.randn(*s, dtype=torch.bfloat16) * 0.05)(B, S, D)),
            "w1": _w((lambda *s: torch.randn(*s, dtype=torch.bfloat16) * 0.8)(D, F) * (D ** -0.5)),
            "b1": _w((lambda *s: torch.randn(*s, dtype=torch.bfloat16) * 0.8)(F) * 0.01),
            "w2": _w((lambda *s: torch.randn(*s, dtype=torch.bfloat16) * 0.2)(F, D) * (F ** -0.5)),
            "b2": _w((lambda *s: torch.randn(*s, dtype=torch.bfloat16) * 0.2)(D) * 0.01),
        }
    _B_in = _B_setup()

    return {
        "A_x": _A_in["x"],
        "A_c_kv": _A_in["c_kv"],
        "A_w_q": _A_in["w_q"],
        "A_w_uk": _A_in["w_uk"],
        "A_w_uv": _A_in["w_uv"],
        "A_w_o": _A_in["w_o"],
        "B_x": _B_in["x"],
        "B_w1": _B_in["w1"],
        "B_b1": _B_in["b1"],
        "B_w2": _B_in["w2"],
        "B_b2": _B_in["b2"],
    }

def reference(A_x, A_c_kv, A_w_q, A_w_uk, A_w_uv, A_w_o, B_x, B_w1, B_b1, B_w2, B_b2):
    def _A_ref(x, c_kv, w_q, w_uk, w_uv, w_o):
        B, Sq, M = x.shape[0], x.shape[1], x.shape[2]
        Sk = c_kv.shape[1]
        H, D = w_q.shape[1], w_q.shape[2]
        q = torch.einsum("bqm,mhd->bhqd", x, w_q)
        k = torch.einsum("bkc,chd->bhkd", c_kv, w_uk)
        v = torch.einsum("bkc,chd->bhkd", c_kv, w_uv)
        scores = torch.einsum("bhqd,bhkd->bhqk", q, k) * (D ** -0.5)
        off = Sk - Sq
        qi = torch.arange(Sq)[:, None]
        kj = torch.arange(Sk)[None, :]
        cmask = kj <= (qi + off)
        scores = torch.where(cmask[None, None], scores, -1e9)
        p = _softmax(scores, axis=-1)
        ctx = torch.einsum("bhqk,bhkd->bhqd", p, v)
        return torch.einsum("bhqd,hdm->bqm", ctx, w_o)

    def _B_ref(x, w1, b1, w2, b2):
        h = torch.einsum("bsd,df->bsf", x, w1) + b1
        h = _gelu(h)
        return torch.einsum("bsf,fd->bsd", h, w2) + b2

    x = A_x
    xn = _layernorm(x, axis=-1)
    s = _A_ref(xn, A_c_kv, A_w_q, A_w_uk, A_w_uv, A_w_o)
    g = _silu(_B_ref(xn, B_w1, B_b1, B_w2, B_b2))
    return x + s * g
```

```python
import re

REG_RE = re.compile(r'^(-|\|)?(abs\()?([vas])(\d+|\[(\d+):(\d+)\])\)?\|?$')

def regs_of(op):
    op = op.strip()
    if op in ('vcc', 'exec', 'm0', 'scc'):
        return {op}
    if op in ('vcc_lo', 'vcc_hi'):
        return {'vcc'}
    if op in ('exec_lo', 'exec_hi'):
        return {'exec'}
    m = REG_RE.match(op)
    if not m:
        return set()
    k = m.group(3)
    if m.group(5) is not None:
        return {(k, i) for i in range(int(m.group(5)), int(m.group(6)) + 1)}
    return {(k, int(m.group(4)))}

TRANS = ('v_exp_f32', 'v_log_f32', 'v_rcp_f32', 'v_rsq_f32', 'v_sqrt_f32', 'v_sin_f32', 'v_cos_f32')
NODST_S = ('s_cmp', 's_cbranch', 's_waitcnt', 's_barrier', 's_nop', 's_branch', 's_setprio', 's_sleep', 's_endpgm', 's_bitcmp')

class I:
    def __init__(self, text, **meta):
        self.text = text.strip()
        self.meta = meta
        self.kind = None
        self.rd = set(); self.wr = set()
        self.parse()
    def parse(self):
        t = self.text
        if t.endswith(':') or t.startswith('.') or t.startswith(';') or t == '':
            self.kind = 'label'; return
        if t.startswith('@wait'):
            self.kind = 'wait'; return
        parts = t.split(None, 1)
        mn = parts[0]; self.mn = mn
        rest = parts[1] if len(parts) > 1 else ''
        rest = rest.split(';')[0]
        ops = []; depth = 0; cur = ''
        for ch in rest:
            if ch == '[': depth += 1
            if ch == ']': depth -= 1
            if ch == ',' and depth == 0:
                ops.append(cur.strip()); cur = ''
            else:
                cur += ch
        if cur.strip(): ops.append(cur.strip())
        mods = ''
        if ops:
            sp = ops[-1].split(None, 1)
            ops[-1] = sp[0]
            mods = sp[1] if len(sp) > 1 else ''
        self.ops = ops; self.mods = mods
        R = [regs_of(o) for o in ops]
        U = lambda l: set().union(*l) if l else set()
        if mn.startswith('v_mfma'):
            self.kind = 'mfma'; self.wr = R[0]; self.rd = U(R[1:]); self.D = R[0]; self.C = R[3]; self.AB = R[1] | R[2]
            self.passes = 4 if '16x16x32' in mn else 8
        elif mn.startswith('v_cmp'):
            self.kind = 'valu'; self.wr = R[0]; self.rd = U(R[1:])
        elif mn.startswith('v_permlane'):
            self.kind = 'valu'; self.wr = U(R); self.rd = U(R); self.perm = True
        elif mn.startswith('v_'):
            self.kind = 'trans' if mn.replace('_e32', '').replace('_e64', '') in TRANS else 'valu'
            self.wr = set(R[0]); self.rd = U(R[1:])
            if mn.startswith(('v_fmac', 'v_pk_fmac', 'v_dot2c')): self.rd |= R[0]
            if mn.startswith(('v_add_co', 'v_addc_co', 'v_sub_co')): self.wr |= R[1]
        elif mn.startswith('ds_read'):
            self.kind = 'dsr'; self.wr = R[0]; self.rd = R[1]
        elif mn.startswith('ds_write'):
            self.kind = 'dsw'; self.rd = U(R)
        elif mn.startswith('buffer_load'):
            if ' lds' in (' ' + mods):
                self.kind = 'dma'; self.rd = U(R) | {'m0'}
            else:
                self.kind = 'vld'; self.wr = R[0]; self.rd = U(R[1:])
        elif mn.startswith('buffer_store') or mn.startswith('buffer_atomic'):
            self.kind = 'vst'; self.rd = U(R); self.data = R[0]
        elif mn == 's_waitcnt':
            self.kind = 'waitcnt'
            m = re.search(r'vmcnt\((\d+)\)', t); self.vm = int(m.group(1)) if m else None
            m = re.search(r'lgkmcnt\((\d+)\)', t); self.lg = int(m.group(1)) if m else None
        elif mn == 's_barrier':
            self.kind = 'barrier'
        elif mn == 's_nop':
            self.kind = 'nop'; self.n = int(ops[0]) + 1
        elif mn.startswith('s_load') or mn.startswith('s_mem'):
            self.kind = 'smem'; self.wr = R[0]; self.rd = U(R[1:])
        elif mn.startswith('s_'):
            self.kind = 'salu'
            if mn.startswith(NODST_S):
                self.rd = U(R)
            else:
                self.wr = set(R[0]); self.rd = U(R[1:])
            if 'saveexec' in mn: self.wr |= {'exec'}
        else:
            raise ValueError('unknown instr: ' + t)
    def is_valu(self): return self.kind in ('valu', 'trans')

def Wt(lg=None, vm=None, note=''):
    w = I('@wait')
    w.lgneed = set(lg) if lg else set()
    w.vmneed = set(vm) if vm else set()
    w.note = note
    return w

def vr(k, lo, n=1):
    return f'{k}{lo}' if n == 1 else f'{k}[{lo}:{lo+n-1}]'
def rs(k, lo, n=1):
    return {(k, i) for i in range(lo, lo + n)}

class Prog:
    def __init__(self):
        self.order = []
        self.canon = {}
        self.waits = {}
        self.drop = {}
    def add(self, name, instrs):
        assert name not in self.canon, name
        instrs = [I(x) if isinstance(x, str) else x for x in instrs]
        self.order.append(name); self.canon[name] = instrs
        return instrs
    def inst(self, name, instrs):
        instrs = [I(x) if isinstance(x, str) else x for x in instrs]
        c = self.canon[name]
        assert len(c) == len(instrs), (name, len(c), len(instrs))
        for a, b in zip(c, instrs):
            assert a.text == b.text, (name, a.text, b.text)
        return (name, instrs)
    @staticmethod
    def _prod(i):
        p = set(i.wr)
        if 'tok' in i.meta: p |= {('L', i.meta['tok'])}
        return p
    def resolve(self, traces):
        self.waits = {}
        for tr in traces:
            vmq = []; lgq = []
            for name, ins in tr:
                for idx, i in enumerate(ins):
                    if i.kind == 'wait':
                        key = (name, idx)
                        cur = self.waits.setdefault(key, [None, None])
                        for q, need, slot, cap in ((vmq, i.vmneed, 0, 63), (lgq, i.lgneed, 1, 15)):
                            if not need: continue
                            n = None
                            for pos in range(len(q) - 1, -1, -1):
                                if 'ALL' in need or (q[pos] & need):
                                    n = len(q) - 1 - pos; break
                            if n is not None:
                                n = min(n, cap)
                                cur[slot] = n if cur[slot] is None else min(cur[slot], n)
                    elif i.kind in ('dma', 'vld', 'vst'):
                        vmq.append(self._prod(i))
                    elif i.kind in ('dsr', 'dsw'):
                        lgq.append(self._prod(i))
                    elif i.kind == 'waitcnt':
                        if i.vm is not None: del vmq[:max(0, len(vmq) - i.vm)]
                        if i.lg is not None: del lgq[:max(0, len(lgq) - i.lg)]
        useful = {}
        for tr in traces:
            nv = nl = 0
            for name, ins in tr:
                for idx, i in enumerate(ins):
                    if i.kind == 'wait':
                        v, l = self.waits.get((name, idx), [None, None])
                        u = useful.setdefault((name, idx), [False, False])
                        if v is not None and nv > v: u[0] = True; nv = v
                        if l is not None and nl > l: u[1] = True; nl = l
                    elif i.kind in ('dma', 'vld', 'vst'): nv += 1
                    elif i.kind in ('dsr', 'dsw'): nl += 1
                    elif i.kind == 'waitcnt':
                        if i.vm is not None: nv = min(nv, i.vm)
                        if i.lg is not None: nl = min(nl, i.lg)
        for k, u in useful.items():
            if not u[0]: self.waits[k][0] = None
            if not u[1]: self.waits[k][1] = None
        for name in self.order:
            for idx, i in enumerate(self.canon[name]):
                if i.kind == 'wait' and (name, idx) not in useful:
                    raise ValueError(f'wait in block {name}[{idx}] never traced')
    def wait_text(self, name, idx):
        v, l = self.waits.get((name, idx), [None, None])
        if v is None and l is None: return None
        s = 's_waitcnt'
        if v is not None: s += f' vmcnt({v})'
        if l is not None: s += f' lgkmcnt({l})'
        return s
    def text(self):
        out = []
        for name in self.order:
            out.append(f'; ---- {name}')
            for idx, i in enumerate(self.canon[name]):
                if i.kind == 'wait':
                    t = self.wait_text(name, idx)
                    if t: out.append('    ' + t)
                elif i.kind == 'label':
                    out.append(i.text)
                else:
                    out.append('    ' + i.text)
        return '\n'.join(out) + '\n'
    def linear(self, tr):
        out = []
        for name, ins in tr:
            for idx, i in enumerate(ins):
                if i.kind == 'wait':
                    t = self.wait_text(name, idx)
                    if t:
                        w = I(t); w.src = (name, idx); out.append(w)
                elif i.kind != 'label':
                    i.src = (name, idx); out.append(i)
        return out
    def check(self, traces):
        errs = []
        for ti, tr in enumerate(traces):
            errs += check_linear(self.linear(tr), ti)
        return errs

def aslist(x):
    if x is None: return []
    return x if isinstance(x, list) else [x]

def ov(a, b): return a[0] < b[1] and b[0] < a[1]

def check_linear(L, ti):
    errs = []
    def err(i, msg): errs.append(f'trace{ti} {i.src} [{i.text}]: {msg}')
    vmq = []; lgq = []
    hist = []
    st = 0
    nbar = 0
    wr_ops = []
    rd_ops = []
    scc_ok = False
    for i in L:
        pend = set()
        for q in (vmq, lgq):
            for o in q: pend |= o[0].wr
        bad = (i.rd | i.wr) & pend
        if bad: err(i, f'touches regs with pending load {sorted(bad, key=str)[:4]}')
        for (p, ps) in reversed(hist[-24:]):
            d = st - ps - 1
            if d >= 20: break
            need = 0; why = ''
            def req(n, w):
                nonlocal need, why
                if n > need: need, why = n, w
            V = lambda s: {r for r in s if isinstance(r, tuple) and r[0] in 'va'}
            S = lambda s: {r for r in s if (isinstance(r, tuple) and r[0] == 's') or r == 'vcc'}
            if p.is_valu():
                if i.kind == 'mfma' and V(p.wr) & i.rd: req(2, 'valu->mfma')
                if p.kind == 'trans' and i.kind == 'valu' and p.wr & i.rd: req(1, 'trans->valu')
                if p.kind == 'trans' and i.kind in ('vst', 'dsw') and p.wr & i.rd: req(1, 'trans->store')
                if i.is_valu() and S(p.wr) & i.rd: req(2, 'valu sgpr->valu')
                if i.kind in ('dma', 'vld', 'vst') and S(p.wr) & i.rd: req(5, 'valu sgpr->vmem')
                if i.is_valu() and i.mn.startswith(('v_readfirstlane', 'v_readlane')) and V(p.wr) & i.rd: req(1, 'valu->readlane')
                if i.is_valu() and getattr(i, 'perm', False) and V(p.wr) & i.rd: req(2, 'valu->permlane')
                if i.is_valu() and '_dpp' in i.mn and V(p.wr) & i.rd: req(2, 'valu->dpp')
                if 'exec' in p.wr and i.kind == 'mfma': req(4, 'exec->mfma')
            if p.kind == 'mfma':
                n8 = 8 if p.passes == 4 else 12
                if i.kind == 'mfma':
                    if p.D & i.AB: req(n8, 'mfma D->AB')
                    if p.D & i.C and p.D != i.C: req(n8 - 2, 'mfma D->C overlap')
                    if p.D & i.D and p.D != i.C: req(n8 - 2, 'mfma WAW')
                elif i.kind in ('valu', 'trans', 'vst', 'dsw', 'vld', 'dsr', 'dma'):
                    if p.D & (i.rd | i.wr): req(n8, 'mfma D->valu/mem')
                    if i.is_valu() and p.C & i.wr: req(3 if p.passes == 4 else 7, 'mfma C WAR')
            if p.kind == 'salu' and 'm0' in p.wr and i.kind == 'dma': req(1, 'm0->dma')
            if p.kind == 'vst' and len(p.data) >= 3:
                if i.is_valu() and p.data & i.wr: req(2, 'store data WAR valu')
                elif p.data & i.wr: req(1, 'store data WAR')
            if d < need: err(i, f'hazard {why}: have {d} need {need} after [{p.text}]')
        if i.kind == 'salu':
            mn = i.mn
            if mn.startswith(('s_cselect', 's_cbranch_scc')) and not scc_ok: err(i, 'scc not from s_cmp')
            if mn.startswith('s_cmp'): scc_ok = True
            elif mn.startswith(('s_add', 's_sub', 's_lsh', 's_and', 's_or', 's_xor', 's_min', 's_max', 's_bfe', 's_not', 's_ashr')): scc_ok = False
        i._rl = []; i._wl = []
        for rng, ver in aslist(i.meta.get('ldsr')):
            ws = [w for w in wr_ops if ov(w['rng'], rng)]
            if not ws: err(i, f'lds read of never written {rng}')
            for w in ws:
                if w['dead']: continue
                if w['ver'] != ver: err(i, f'lds read ver {ver} but region holds {w["ver"]} {w["rng"]}')
                elif w['done'] is None: err(i, f'lds read before write complete {ver}')
                elif not w['own'] and w['done'] >= nbar: err(i, f'lds read without barrier after write complete {ver}')
            r_ = dict(rng=rng, ver=ver, done=None, own=i.meta.get('own', False)); rd_ops.append(r_); i._rl.append(r_)
        for rng, ver in aslist(i.meta.get('ldsw')):
            for r in rd_ops:
                if ov(r['rng'], rng) and r['ver'] == ver: err(i, f'lds write {ver} after a read of the same version')
                if ov(r['rng'], rng) and r['ver'] != ver:
                    if r['done'] is None: err(i, f'lds write {ver} while read of {r["ver"]} pending')
                    elif not (r['own'] and i.meta.get('own', False)) and r['done'] >= nbar: err(i, f'lds write {ver} without barrier after reads of {r["ver"]}')
            rd_ops = [r for r in rd_ops if not (ov(r['rng'], rng) and r['ver'] != ver and r['done'] is not None and r['done'] < nbar)]
            for w in wr_ops:
                if ov(w['rng'], rng) and w['ver'] != ver:
                    if w['done'] is None and not w['dead']: err(i, f'lds write {ver} while write {w["ver"]} pending')
                    w['dead'] = True
            wr_ops = [w for w in wr_ops if not w['dead']]
            w_ = dict(rng=rng, ver=ver, done=None, own=i.meta.get('own', False), dead=False); wr_ops.append(w_); i._wl.append(w_)
        if i.kind in ('dma', 'vld', 'vst'): vmq.append((i, i._rl + i._wl))
        elif i.kind in ('dsr', 'dsw'): lgq.append((i, i._rl + i._wl))
        elif i.kind == 'waitcnt':
            for q, n in ((vmq, i.vm), (lgq, i.lg)):
                if n is None: continue
                k = max(0, len(q) - n)
                for o in q[:k]:
                    for x in o[1]: x['done'] = nbar
                del q[:k]
        elif i.kind == 'barrier': nbar += 1
        if len(vmq) > 63: err(i, 'vmcnt overflow')
        hist.append((i, st))
        st += i.n if i.kind == 'nop' else 1
    return errs

def gaps(mf, fill, tail=None):
    out = []
    n = len(mf)
    for g in range(n):
        out.append(mf[g] if not isinstance(mf[g], str) else I(mf[g]))
        items = [I(x) if isinstance(x, str) else x for x in fill.get(g, [])]
        pri = lambda x: 0 if x.kind in ('salu', 'wait', 'waitcnt', 'barrier', 'nop') else (1 if x.kind in ('dsr', 'dsw', 'dma', 'vld', 'vst') else 2)
        if not any(x.meta.get('keep') for x in items):
            items.sort(key=pri)
        out += items
    for g in fill:
        assert g < n, (g, n)
    return out
```

```python
import sys, math, struct
from asmlib import *

STOP = None
for a in sys.argv[1:]:
    if a.startswith('stop='): STOP = a.split('=')[1]
OUT = [a for a in sys.argv[1:] if a.endswith('.s')]
OUT = OUT[0] if OUT else 'out.s'
NAME = 'recurrent_scan__compressed_kv_cla__dense_activation_gelu__prompt_kernel'

def f2u(x): return '0x%08x' % struct.unpack('<I', struct.pack('<f', x))[0]
LOG2E = math.log2(math.e)
CSC = LOG2E / math.sqrt(128.0)

XN_OFF = 0
KV_OFF = 2 << 20
AF_OFF = 34 << 20
AF_TILE = 171 * 8192
PART_OFF = 58 << 20
OOB = 0x40000000
F_XN, F_KV, F_H, F_CTX, F_P3 = 0, 1, 9, 17, 33

sW, sH, sI = 's4', 's5', 's6'
pX, pCKV, pWQ, pWUK, pWUV, pWO, pW1, pB1, pW2, pB2, pOUT, pDBG, pWS = 16, 18, 20, 22, 24, 26, 30, 32, 34, 36, 38, 40, 42
SA, SB, SWS, SDBG, SC = 's[44:47]', 's[48:51]', 's[52:55]', 's[56:59]', 's[60:63]'
def srd(base, ptr, size):
    return [f's_mov_b32 s{base}, s{ptr}', f's_mov_b32 s{base+1}, s{ptr+1}', f's_mov_b32 s{base+2}, {size}', f's_mov_b32 s{base+3}, 0x00020000']
vLANE, vL16 = 'v1', 'v2'
MF = 'v_mfma_f32_16x16x32_bf16'

P = Prog()
TR = []
def blk(name, ins):
    ins = P.add(name, ins)
    return (name, ins)

def signal(dw_sreg_or_imm, val_text, lab):
    return []

def p0():
    c = []
    c += ['s_cmp_ge_u32 s2, 256', 's_cbranch_scc1 L_end']
    c += ['s_load_dwordx16 s[16:31], s[0:1], 0', 's_load_dwordx8 s[32:39], s[0:1], 64', 's_load_dwordx4 s[40:43], s[0:1], 96']
    c += ['v_and_b32 v1, 63, v0', 'v_lshrrev_b32 v3, 6, v0', 'v_lshlrev_b32 v2, 4, v1', 'v_readfirstlane_b32 s4, v3']
    c += ['s_and_b32 s8, s2, 7', 's_lshr_b32 s9, s2, 3', 's_and_b32 s10, s9, 3', 's_lshl_b32 s5, s8, 2', 's_add_u32 s5, s5, s10', 's_lshr_b32 s6, s9, 2']
    c += ['v_lshrrev_b32 v28, 4, v1', 'v_and_b32 v29, 15, v1', 'v_lshrrev_b32 v30, 3, v1', 'v_and_b32 v31, 7, v1']
    c += ['s_lshl_b32 s8, s6, 8', 's_lshl_b32 s9, s4, 6', 's_add_u32 s8, s8, s9', 's_lshl_b32 s8, s8, 10']
    c += ['v_lshlrev_b32 v32, 10, v30', 'v_add_u32 v32, s8, v32', 'v_xor_b32 v33, v31, v28', 'v_lshlrev_b32 v33, 4, v33', 'v_xor_b32 v34, 64, v33']
    for j in range(8):
        c += [f'v_add_u32 v{4+j}, v32, v{33 + (j & 1)}']
        k = 8 * j * 1024 - (j & 3) * 1024
        if k: c += [f'v_add_u32 v{4+j}, {k}, v{4+j}']
    c += ['s_lshr_b32 s9, s4, 1', 's_lshl_b32 s9, s9, 17', 's_lshl_b32 s10, s5, 8', 's_add_u32 s9, s9, s10']
    c += ['v_lshlrev_b32 v32, 13, v28', 'v_add_u32 v32, s9, v32', 'v_lshlrev_b32 v33, 1, v28', 'v_xor_b32 v33, v33, v29', 'v_lshlrev_b32 v33, 4, v33', 'v_xor_b32 v34, 128, v33']
    for j in range(4):
        c += [f'v_add_u32 v{12+j}, v32, v{33 + (j >> 1)}']
        k = 4 * j * 8192 - j * 1024
        if k: c += [f'v_add_u32 v{12+j}, {k}, v{12+j}']
    c += ['s_waitcnt lgkmcnt(0)']
    c += srd(44, pCKV, 0x200000)
    c += ['s_and_b32 s7, s4, 1', 's_cmp_eq_u32 s7, 0', f's_cselect_b32 s48, s{pWUK}, s{pWUV}', f's_cselect_b32 s49, s{pWUK+1}, s{pWUV+1}', 's_mov_b32 s50, 0x400000', 's_mov_b32 s51, 0x00020000']
    c += srd(52, pWS, 0x10000000) + srd(56, pDBG, 256) + srd(60, pX, 0x200000)
    c += ['s_lshl_b32 s8, s2, 3', 's_lshl_b32 s9, s4, 1', 's_add_u32 s8, s8, s9', 's_lshl_b32 s9, s8, 10']
    c += [f'buffer_load_dwordx4 v[40:43], v2, {SC}, s9 offen', f'buffer_load_dwordx4 v[44:47], v2, {SC}, s9 offen offset:1024']
    c += ['s_lshl_b32 s64, s7, 13', 's_lshr_b32 s10, s4, 1', 's_lshl_b32 s10, s10, 12', 's_add_u32 s64, s64, s10', 's_lshl_b32 s65, s4, 13']
    def wdma(k):
        r = [f's_add_u32 m0, s64, {(k & 3) * 16384}', f's_mov_b32 s66, {k << 18}']
        for j in range(4):
            r.append(I(f'buffer_load_dwordx4 v{12+j}, {SB}, s66 offen offset:{j*1024} lds', tok=f'W{k}', ldsw=(((k & 3) * 16384, (k & 3) * 16384 + 16384), f'W{k}')))
        return r
    def cdma(u, half):
        base = 65536 + (u % 3) * 32768
        r = [f's_add_u32 m0, s65, {base + half * 4096}', f's_mov_b32 s67, {u * 128}']
        for j in range(4):
            r.append(I(f'buffer_load_dwordx4 v{4+half*4+j}, {SA}, s67 offen offset:{j*1024} lds', tok=f'C{u}', ldsw=((base, base + 32768), f'C{u}')))
        return r
    c += wdma(0) + cdma(0, 0) + cdma(0, 1) + wdma(1) + cdma(1, 0) + cdma(1, 1) + wdma(2) + wdma(3) + cdma(2, 0)
    c += ['s_lshr_b32 s10, s4, 1', 's_lshl_b32 s10, s10, 14', 'v_lshlrev_b32 v32, 7, v29', 'v_add_u32 v32, s10, v32',
          'v_lshrrev_b32 v33, 1, v29', 'v_xor_b32 v33, v33, v28', 'v_lshlrev_b32 v33, 4, v33', 'v_add_u32 v16, v32, v33', 'v_xor_b32 v17, 64, v16',
          'v_add_u32 v18, 65536, v16', 'v_add_u32 v19, 65536, v17']
    c += ['v_bfe_u32 v32, v1, 2, 2', 'v_and_b32 v33, 3, v1', 'v_lshl_add_u32 v34, v28, 3, v32', 'v_lshlrev_b32 v34, 8, v34', 'v_lshl_add_u32 v34, v33, 3, v34',
          's_lshl_b32 s10, s7, 13', 'v_add_u32 v34, s10, v34', 'v_and_b32 v35, 1, v28', 'v_lshl_or_b32 v35, v35, 2, v32']
    for db in range(8):
        c += [f'v_xor_b32 v36, {db}, v35', f'v_lshl_add_u32 v{20+db}, v36, 5, v34']
    c += [Wt(vm=rs('v', 40, 8))]
    for row in range(2):
        for q in range(4):
            s = 40 + 4 * row + q; d = 48 + 8 * row + 2 * q
            c += [f'v_lshlrev_b32 v{d}, 16, v{s}', f'v_and_b32 v{d+1}, 0xffff0000, v{s}']
    def tree(dst, src):
        r = []
        for row in range(2):
            b = src + 8 * row
            r += [f'v_add_f32 v{dst+row}, v{b}, v{b+1}']
        for k in range(2, 8):
            for row in range(2):
                r += [f'v_add_f32 v{dst+row}, v{dst+row}, v{src + 8*row + k}']
        return r
    def allred(a):
        r = []
        for m in ('quad_perm:[1,0,3,2]', 'quad_perm:[2,3,0,1]', 'row_half_mirror', 'row_mirror'):
            r += ['s_nop 0']
            for row in range(2):
                r += [f'v_add_f32_dpp v{a+row}, v{a+row}, v{a+row} {m} row_mask:0xf bank_mask:0xf']
        for pl in ('v_permlane16_swap_b32', 'v_permlane32_swap_b32'):
            for row in range(2): r += [f'v_mov_b32 v{a+2+row}, v{a+row}']
            r += ['s_nop 0']
            for row in range(2): r += [f'{pl} v{a+2+row}, v{a+row}']
            for row in range(2): r += [f'v_add_f32 v{a+row}, v{a+row}, v{a+2+row}']
        return r
    c += tree(64, 48) + allred(64)
    c += [f'v_mul_f32 v64, {f2u(1/512)}, v64', f'v_mul_f32 v65, {f2u(1/512)}, v65']
    for row in range(2):
        for k in range(8):
            c += [f'v_sub_f32 v{72+8*row+k}, v{48+8*row+k}, v{64+row}']
    for row in range(2):
        for k in range(8):
            c += [f'v_mul_f32 v{72+8*row+k}, v{72+8*row+k}, v{72+8*row+k}']
    c += tree(68, 72) + allred(68)
    c += [f'v_mul_f32 v68, {f2u(1/512)}, v68', f'v_mul_f32 v69, {f2u(1/512)}, v69']
    c += ['v_cvt_pk_bf16_f32 v70, v64, v65', 'v_cvt_pk_bf16_f32 v71, v68, v69',
          'v_lshlrev_b32 v64, 16, v70', 'v_and_b32 v65, 0xffff0000, v70', 'v_lshlrev_b32 v68, 16, v71', 'v_and_b32 v69, 0xffff0000, v71',
          f'v_add_f32 v68, {f2u(1e-5)}, v68', f'v_add_f32 v69, {f2u(1e-5)}, v69', 'v_cvt_pk_bf16_f32 v71, v68, v69',
          'v_lshlrev_b32 v68, 16, v71', 'v_and_b32 v69, 0xffff0000, v71', 'v_sqrt_f32 v68, v68', 'v_sqrt_f32 v69, v69', 's_nop 0',
          'v_cvt_pk_bf16_f32 v71, v68, v69', 'v_lshlrev_b32 v68, 16, v71', 'v_and_b32 v69, 0xffff0000, v71', 'v_rcp_f32 v68, v68', 'v_rcp_f32 v69, v69', 's_nop 0',
          f'v_mul_f32 v68, {f2u(CSC)}, v68', f'v_mul_f32 v69, {f2u(CSC)}, v69']
    for row in range(2):
        b = 48 + 8 * row
        for k in range(8): c += [f'v_sub_f32 v{b+k}, v{b+k}, v{64+row}']
        for q in range(4): c += [f'v_cvt_pk_bf16_f32 v{72+q}, v{b+2*q}, v{b+2*q+1}']
        for q in range(4): c += [f'v_lshlrev_b32 v{b+2*q}, 16, v{72+q}', f'v_and_b32 v{b+2*q+1}, 0xffff0000, v{72+q}']
        for k in range(8): c += [f'v_mul_f32 v{b+k}, v{b+k}, v{68+row}']
        for q in range(4): c += [f'v_cvt_pk_bf16_f32 v{40+4*row+q}, v{b+2*q}, v{b+2*q+1}']
    c += ['s_lshr_b32 s9, s8, 6', 's_lshl_b32 s9, s9, 16', 's_bfe_u32 s10, s8, 0x20004', 's_lshl_b32 s10, s10, 10', 's_add_u32 s9, s9, s10',
          's_and_b32 s10, s8, 15', 's_lshl_b32 s10, s10, 4', 's_add_u32 s9, s9, s10',
          'v_lshrrev_b32 v32, 2, v1', 'v_lshlrev_b32 v32, 12, v32', 'v_and_b32 v33, 3, v1', 'v_lshl_add_u32 v32, v33, 8, v32']
    c += [I(f'buffer_store_dwordx4 v[40:43], v32, {SWS}, s9 offen sc1', tok='LN'), I(f'buffer_store_dwordx4 v[44:47], v32, {SWS}, s9 offen offset:16 sc1', tok='LN')]
    c += ['s_nop 1']
    for r in range(40, 256): c += [f'v_mov_b32 v{r}, 0']
    for r in range(192, 232): c += [f'v_accvgpr_write_b32 a{r}, 0']
    c += ['s_mov_b32 s66, %d' % (4 << 18), 's_mov_b32 s67, 256', 's_mov_b32 s68, %d' % (65536 + 2 * 32768), 's_mov_b32 s69, 65536', 's_mov_b32 s70, 0']
    c += [Wt(vm={('L', 'W0'), ('L', 'C0')}), 's_barrier']
    c += ['s_cmp_eq_u32 s7, 1', 's_cbranch_scc1 L_p1_1']
    return c

def accreg(pos, half):
    if half == 0: return ('v', 128 + 4 * pos)
    return ('v', 40 + 4 * pos) if pos < 22 else ('a', 192 + 4 * (pos - 22))
def p1_reads(k, wc):
    s = k & 1; u = k >> 1; e = k & 1
    cb = 65536 + (u % 3) * 32768; wb = (k & 3) * 16384
    T = []; D = []
    for n in range(8):
        for e2 in range(2):
            T.append(I(f'ds_read_b64_tr_b16 a[{96+64*s+4*n+2*e2}:{96+64*s+4*n+2*e2+1}], v{20+n} offset:{wb + e2*1024}', ldsr=((wb, wb + 16384), f'W{k}')))
        D.append(I(f'ds_read_b128 a[{64+64*s+4*n}:{64+64*s+4*n+3}], v{18+e} offset:{n*2048}', ldsr=((cb, cb + 32768), f'C{u}')))
    return T, D
def p1_pre(wc):
    T, D = p1_reads(0, wc)
    return [f'L_p1_{wc}:'] + T + D + [Wt(lg={'ALL'})]
P2SLOT = [98304 + ((k + 3) % 5) * 11264 for k in range(16)]
def p2a_dma(k):
    b = P2SLOT[k]
    r = [[f's_add_u32 m0, s71, {b}', f's_mov_b32 s72, {k << 18}',
          I(f'buffer_load_dwordx4 v28, {SA}, s72 offen lds', tok=f'X{k}', ldsw=((b, b + 11264), f'X{k}'))],
         [I(f'buffer_load_dwordx4 v29, {SA}, s72 offen offset:1024 lds', tok=f'X{k}', ldsw=((b, b + 11264), f'X{k}'))],
         [f's_add_u32 m0, s73, {b + 8192}', f's_mov_b32 s72, {k * 32 * 2752}',
          I(f'buffer_load_dwordx4 v30, {SC}, s72 offen lds', tok=f'X{k}', ldsw=((b, b + 11264), f'X{k}'))]]
    return r
def p2a_xn(k):
    r = []
    for qb in range(4):
        pre = [f's_add_u32 s75, s74, {k * 4096}'] if qb == 0 else []
        a = 16 * (k & 3) + 4 * qb
        r.append(pre + [I(f'buffer_load_dwordx4 a[{a}:{a+3}], v2, {SWS}, s75 offen offset:{qb*1024} sc1')])
    return r

def p1_kstep(k, wc, peeled):
    s = k & 1; q = k & 3
    mf = []
    for i in range(8):
        for j in range(8):
            pos = (i >> 1) * 8 + j if wc == 1 else 4 * j + (i >> 1)
            kk, r = accreg(pos, i & 1)
            cf = lambda n: f'a[{64+64*s+4*n}:{64+64*s+4*n+3}]'
            wf = lambda n: f'a[{96+64*s+4*n}:{96+64*s+4*n+3}]'
            A, B = (cf(i), wf(j)) if wc == 1 else (wf(i), cf(j))
            mf.append(f'{MF} {vr(kk, r, 4)}, {A}, {B}, {vr(kk, r, 4)}')
    fill = {g: [] for g in range(64)}
    need = set()
    if k < 15: need = {('L', f'W{k+1}'), ('L', f'C{(k+1)>>1}')}
    if k == 3: need.add(('L', 'LN'))
    if k == 14: need.add(('L', 'C8'))
    fill[0] += [Wt(vm=need), 's_barrier']
    gl = [8 * n + 4 for n in range(8)]
    free = [g for g in range(1, 63) if g not in gl]
    if k < 15:
        T, D = p1_reads(k + 1, wc)
        seq = []
        for n in range(8): seq += [T[2*n], T[2*n+1], D[n]]
        for g, x in zip(free, seq): fill[g].append(x)
        fill[62].append(Wt(lg={'ALL'}))
    if not peeled:
        wb = q * 16384
        fill[gl[0] - 1] += [f's_add_u32 m0, s64, {wb}']
        for j in range(4):
            fill[gl[j]].append(I(f'buffer_load_dwordx4 v{12+j}, {SB}, s66 offen offset:{j*1024} lds', tok=f'W{k+4}', ldsw=((wb, wb + 16384), f'W{k+4}')))
        fill[gl[3] + 1] += [f's_add_u32 s66, s66, {1 << 18}']
        half = 0 if (k & 1) else 1
        u = (k - 1) // 2 + 3 if (k & 1) else k // 2 + 2
        cb = 65536 + (u % 3) * 32768
        if k & 1:
            fill[gl[3] + 2] += ['s_add_u32 s68, s68, 32768', 's_cmp_eq_u32 s68, 163840']
            fill[gl[3] + 3] += ['s_cselect_b32 s68, 65536, s68', 's_add_u32 s67, s67, 128']
            fill[gl[3] + 4] += ['s_cmp_eq_u32 s67, 1024', f's_cselect_b32 s67, {OOB}, s67']
        fill[gl[4] - 2] += ['s_add_u32 s3, s68, s65']
        fill[gl[4] - 1] += [f's_add_u32 m0, s3, {half * 4096}']
        for j in range(4):
            fill[gl[4 + j]].append(I(f'buffer_load_dwordx4 v{4+half*4+j}, {SA}, s67 offen offset:{j*1024} lds', tok=f'C{u}', ldsw=((cb, cb + 32768), f'C{u}')))
    if (k & 1) == 0 and k < 14:
        fill[5] += ['s_add_u32 s69, s69, 32768', 's_cmp_eq_u32 s69, 163840', 's_cselect_b32 s69, 65536, s69']
        fill[30] += ['v_add_u32 v18, s69, v16', 'v_add_u32 v19, s69, v17']
    if peeled:
        if k == 12:
            x = []
            x += srd(44, pWQ, 0x400000) + srd(60, pW1, 512 * 2752)
            x += ['s_lshl_b32 s71, s4, 11', 's_min_u32 s73, s4, 2', 's_lshl_b32 s73, s73, 10']
            x += ['s_sub_u32 s3, 15, s6', 's_cmp_eq_u32 s7, 0', 's_cselect_b32 s3, s3, s6', 's_lshl_b32 s3, s3, 1', 's_lshr_b32 s8, s4, 1', 's_add_u32 s3, s3, s8', 's_lshl_b32 s74, s3, 16']
            x += ['s_lshl_b32 s8, s4, 16', 's_lshl_b32 s9, s5, 8', 's_add_u32 s8, s8, s9', 's_lshl_b32 s9, s7, 2', 's_mul_i32 s10, s5, 96']
            for n, t in enumerate(x): fill[33 + n // 2].append(t)
            y = ['v_lshrrev_b32 v32, 4, v1', 'v_and_b32 v33, 15, v1', 'v_or_b32 v34, s9, v32', 'v_lshlrev_b32 v34, 1, v34', 'v_xor_b32 v34, v34, v33',
                 'v_lshlrev_b32 v34, 4, v34', 'v_lshl_add_u32 v34, v32, 13, v34', 'v_add_u32 v28, s8, v34', f'v_add_u32 v29, {4*8192-1024}, v28']
            y += ['v_lshrrev_b32 v35, 4, s73', 'v_add_u32 v35, v35, v1', 'v_mul_u32_u24 v36, 10923, v35', 'v_lshrrev_b32 v36, 16, v36',
                  'v_mul_u32_u24 v37, 6, v36', 'v_sub_u32 v37, v35, v37', 'v_and_b32 v38, 19, v36', 'v_and_b32 v39, 4, v36', 'v_lshl_or_b32 v38, v39, 1, v38',
                  'v_and_b32 v39, 8, v36', 'v_lshrrev_b32 v39, 1, v39', 'v_or_b32 v38, v38, v39', 'v_mul_u32_u24 v38, 2752, v38', 'v_lshl_add_u32 v38, v37, 4, v38', 'v_add_u32 v30, s10, v38']
            y += ['v_and_b32 v35, 32, v1', 'v_lshrrev_b32 v35, 1, v35', 'v_bfe_u32 v36, v1, 2, 3', 'v_or_b32 v35, v35, v36', 'v_mul_u32_u24 v35, 96, v35',
                  'v_and_b32 v36, 3, v1', 'v_lshl_add_u32 v35, v36, 3, v35', f'v_add_u32 v31, {98304+8192}, v35']
            for n, t in enumerate(y): fill[46 + n // 2].append(t)
            fill[gl[0]].append(f'buffer_load_dword v3, off, {SDBG}, 0 offset:{F_XN*4} sc1')
        if k == 13:
            fill[40] += [Wt(vm={('v', 3)})]
            fill[41] += ['v_readfirstlane_b32 s3, v3']
            fill[44] += [I('s_cmp_ge_u32 s3, 256', keep=True), f's_cbranch_scc0 L_pollxn_{wc}', f'L_pollxn_ret_{wc}:']
        if k in (14, 15):
            items = []
            for kk in ((0, 1) if k == 14 else (2, 3, 4)): items += p2a_dma(kk)
            for kk in ((0, 1) if k == 14 else (2,)): items += p2a_xn(kk)
            gs = [g for g in range(30 if k == 14 else 2, 62, 2)]
            for g, it in zip(gs, items):
                for x in it:
                    x = I(x) if isinstance(x, str) else x
                    (fill[g - 1] if x.kind == 'salu' else fill[g]).append(x)
    return gaps(mf, fill)

def p1_backedge(wc):
    return ['s_add_u32 s70, s70, 1', 's_lshl_b32 s3, s4, 2', 's_add_u32 s3, s3, s70', 's_cmp_eq_u32 s3, 1', f's_cbranch_scc1 L_sigxn_{wc}', f'L_sigxn_ret_{wc}:',
            's_cmp_lt_u32 s70, 3', f's_cbranch_scc1 L_p1loop_{wc}']

def sig_stub(lab, ret, offs, val):
    return [f'{lab}:', 's_mov_b64 s[98:99], exec', 's_mov_b64 exec, 1', f'v_mov_b32 v3, {val}',
            f'buffer_atomic_add v3, off, {SDBG}, {offs}', 's_mov_b64 exec, s[98:99]', f's_branch {ret}']
def poll_stub(lab, ret, offs, shift, mask, target):
    return [f'{lab}:', 's_mov_b32 s100, 0x40000', f'{lab}_l:', f'buffer_load_dword v3, off, {SDBG}, {offs} sc1', 's_waitcnt vmcnt(0)',
            'v_readfirstlane_b32 s3, v3', f's_lshr_b32 s3, s3, {shift}', f's_and_b32 s3, s3, {mask}', f's_cmp_ge_u32 s3, {target}', f's_cbranch_scc1 {ret}',
            's_sleep 4', 's_sub_u32 s100, s100, 1', 's_cmp_lg_u32 s100, 0', f's_cbranch_scc1 {lab}_l', f's_branch {ret}']

def p2a_reads(k):
    s = k & 1; b = P2SLOT[k]; o = b - 98304
    T = []
    for n in range(11):
        for e2 in range(2):
            d = 64 + 44 * s + 4 * n + 2 * e2
            if n < 8: t = f'ds_read_b64_tr_b16 a[{d}:{d+1}], v{20+n} offset:{o + e2*1024}'
            else: t = f'ds_read_b64_tr_b16 a[{d}:{d+1}], v31 offset:{o + e2*768 + (n-8)*32}'
            T.append(I(t, ldsr=((b, b + 11264), f'X{k}')))
    return T
def trans12():
    c = ['L_p1_done:']
    c += ['s_lshl_b32 s3, s7, 13', 's_sub_u32 s3, 98304, s3']
    for n in range(8): c += [f'v_add_u32 v{20+n}, s3, v{20+n}']
    c += [Wt(vm={('L', 'X0')}), 's_barrier']
    c += p2a_reads(0)
    c += ['s_lshl_b32 s76, s5, 20', 's_lshl_b32 s3, s6, 17', 's_add_u32 s76, s76, s3', 's_lshr_b32 s3, s4, 1', 's_lshl_b32 s3, s3, 16', 's_add_u32 s76, s76, s3',
          's_lshl_b32 s3, s7, 13', 's_add_u32 s76, s76, s3', f's_add_u32 s76, s76, {KV_OFF}']
    for pos in range(32):
        e = 128 + 4 * pos
        kk, o = accreg(pos, 1)
        if kk == 'a':
            for r in range(4): c += [f'v_accvgpr_read_b32 v{32+r}, a{o+r}']
            o = 32
        c += [f'v_cvt_pk_bf16_f32 v{e}, v{e}, v{e+1}', f'v_cvt_pk_bf16_f32 v{e+1}, v{e+2}, v{e+3}',
              f'v_cvt_pk_bf16_f32 v{e+2}, v{o}, v{o+1}', f'v_cvt_pk_bf16_f32 v{e+3}, v{o+2}, v{o+3}']
    c += [Wt(lg={'ALL'}, vm=rs('a', 0, 16))]
    return c

def qacc(db, qb):
    qi = db * 4 + qb
    return ('v', 88 + 4 * qi) if qi < 10 else ('a', 152 + 4 * (qi - 10))
def facc(fb, qb): return ('v', 40 + 4 * (fb * 4 + qb))
def p2a_kstep(k):
    s = k & 1
    mf = []
    for n in range(11):
        for qb in range(4):
            kk, r = qacc(n, qb) if n < 8 else facc(n - 8, qb)
            x = 16 * (k & 3) + 4 * qb
            C = '0' if k == 0 else vr(kk, r, 4)
            mf.append(f'{MF} {vr(kk, r, 4)}, a[{64+44*s+4*n}:{64+44*s+4*n+3}], a[{x}:{x+3}], {C}')
    fill = {g: [] for g in range(44)}
    need = set()
    if k < 15: need.add(('L', f'X{k+1}'))
    if k == 13: need.add(('L', 'KV'))
    fill[0] += [Wt(vm=need), 's_barrier']
    items = []
    if k + 5 <= 15: items += p2a_dma(k + 5)
    if k + 3 <= 15: items += p2a_xn(k + 3)
    for n in range(3 * k, min(3 * k + 3, 32)):
        pre = [f's_add_u32 s77, s76, {(n >> 3) * 16384 + ((n >> 2) & 1) * 4096}'] if (n % 4 == 0 or n % 3 == 0) else []
        items.append(pre + [I(f'buffer_store_dwordx4 v[{128+4*n}:{131+4*n}], v2, {SWS}, s77 offen offset:{(n&3)*1024} sc1', tok='KV')])
    if k == 13:
        fill[1] += [I('s_cmp_eq_u32 s4, 0', keep=True), 's_cbranch_scc1 L_sigkv', 'L_sigkv_ret:']
        items.append(srd(48, pB1, 2752)[:2] + ['v_lshrrev_b32 v38, 4, v1'])
        items.append(srd(48, pB1, 2752)[2:] + ['v_lshlrev_b32 v38, 3, v38'])
        items.append(['s_mul_i32 s3, s5, 96'])
        for fb in range(3): items.append([f'buffer_load_dwordx2 v[{32+2*fb}:{33+2*fb}], v38, {SB}, s3 offen offset:{fb*32}'])
    if k == 15:
        fill[30] += ['s_lshr_b32 s78, s5, 2', 's_lshl_b32 s78, s78, 2']
        fill[31] += [f's_add_u32 s78, s78, {F_KV*4}', 's_and_b32 s79, s5, 3']
        fill[32] += ['s_lshl_b32 s79, s79, 3']
        fill[40] += [f'buffer_load_dword v3, off, {SDBG}, s78 sc1']
    T = p2a_reads(k + 1) if k < 15 else []
    g = 2; ti = 0; ii = 0
    while ti < len(T) or ii < len(items):
        for _ in range(2):
            if ti < len(T): fill[g].append(T[ti]); ti += 1; g += 1
        if ii < len(items):
            for x in items[ii]:
                x = I(x) if isinstance(x, str) else x
                (fill[g - 1] if x.kind == 'salu' else fill[g]).append(x)
            ii += 1; g += 1
    if k < 15: fill[42].append(Wt(lg={'ALL'}, vm=rs('a', 16 * ((k + 1) & 3), 16)))
    return gaps(mf, fill)

def Sreg(b, kb, qb): return 64 + 32 * b + (qb * 2 + kb) * 4
def Preg(b, qb): return 128 + 16 * b + 4 * qb
def NM(qb): return 160 + 4 * qb
def FR(g): return 176 + 4 * (g & 7)
TMP = 208
def Lr(b, qb): return 224 + 4 * b + qb
vCUR, vNXT, vDEL, vNEG = 'v232', 'v233', 'v234', 'v235'
def Oreg(db, qb): return (db * 4 + qb) * 4
def Qreg(ds, qb): return 128 + (ds * 4 + qb) * 4
def kslot(x): return ((x >> 1) & 1) * 65536 + (x & 1) * 16384
def kv_dma(kind, x, gidx):
    pass

def p2a_epi():
    c = ['s_nop 7']
    for ds in range(4):
        for qb in range(4):
            d = 128 + (ds * 4 + qb) * 4
            for hf in range(2):
                kk, r = qacc(2 * ds + hf, qb)
                if kk == 'a':
                    t = 192 + 4 * ((ds * 8 + qb * 2 + hf) & 3)
                    for j in range(4): c += [f'v_accvgpr_read_b32 v{t+j}, a{r+j}']
                    r = t
                c += [f'v_cvt_pk_bf16_f32 v{d+2*hf}, v{r}, v{r+1}', f'v_cvt_pk_bf16_f32 v{d+2*hf+1}, v{r+2}, v{r+3}']
    c += [Wt(vm={('v', 3)}), 'v_readfirstlane_b32 s3, v3', 's_lshr_b32 s3, s3, s79', 's_and_b32 s3, s3, 0xff', 's_cmp_ge_u32 s3, 8', 's_cbranch_scc0 L_pollkv', 'L_pollkv_ret:']
    c += ['s_lshr_b32 s8, s4, 1', 's_lshl_b32 s9, s8, 12', 's_lshl_b32 s10, s7, 13', 's_add_u32 s80, s9, s10', 's_add_u32 s81, s80, 65536',
          's_lshl_b32 s84, s5, 20', 's_lshl_b32 s10, s7, 15', 's_add_u32 s84, s84, s10', 's_add_u32 s84, s84, s9', f's_add_u32 s84, s84, {KV_OFF}',
          's_add_u32 s88, s84, 8192']
    for kind, x in (('K', 0), ('K', 1), ('V', 0), ('K', 2), ('K', 3), ('V', 1)):
        lb = kslot(x) + (32768 if kind == 'V' else 0)
        go = (x >> 1) * 65536 + (x & 1) * 16384
        c += [f's_add_u32 m0, s80, {lb}', f's_add_u32 s3, s{84 if kind == "K" else 88}, {go}']
        for j in range(4):
            c.append(I(f'buffer_load_dwordx4 v2, {SWS}, s3 offen offset:{j*1024} sc1 lds', tok=f'{kind}{x}', ldsw=((lb, lb + 16384), f'{kind}{x}')))
    c += ['s_add_u32 s82, s84, 131072', 's_sub_u32 s83, 14, s6', 's_add_u32 s85, s6, 1', 's_add_u32 s86, s88, 65536', 's_sub_u32 s87, 15, s6', 's_add_u32 s89, s6, 1']
    c += ['s_lshl_b32 s3, s4, 14', 's_add_u32 s3, s3, 98304', 'v_add_u32 v39, s3, v2', 's_barrier']
    for f in range(16):
        c.append(I(f'ds_write_b128 v39, v[{128+4*f}:{131+4*f}] offset:{f*1024}', ldsw=((98304, 163840), 'QX')))
    c += ['s_lshl_b32 s3, s8, 15', 's_add_u32 s3, s3, 98304', 'v_add_u32 v39, s3, v2', Wt(lg={'ALL'}), 's_barrier']
    for f in range(32):
        c.append(I(f'ds_read_b128 a[{128+4*f}:{131+4*f}], v39 offset:{f*1024}', ldsr=((98304, 163840), 'QX')))
    K0 = -2.0 * LOG2E * math.sqrt(2.0 / math.pi); K1 = K0 * 0.044715
    c += [f's_mov_b32 s8, {f2u(1.0 / CSC)}', f's_mov_b32 s9, {f2u(K1)}', f'v_mov_b32 v38, {f2u(K0)}', Wt(vm=rs('v', 32, 6))]
    for fb in range(3):
        for j in range(2):
            c += [f'v_lshlrev_b32 v{192+4*fb+2*j}, 16, v{32+2*fb+j}', f'v_and_b32 v{193+4*fb+2*j}, 0xffff0000, v{32+2*fb+j}']
    for fb in range(3):
        for qb in range(0, 4, 2):
            R = [facc(fb, qb + (n >> 2))[1] + (n & 3) for n in range(8)]
            Tm = [208 + n for n in range(8)]
            st = [lambda x, t, n: f'v_fma_f32 v{x}, v{x}, s8, v{192+4*fb+(n&3)}', lambda x, t, n: f'v_mul_f32 v{t}, v{x}, v{x}',
                  lambda x, t, n: f'v_fma_f32 v{t}, v{t}, s9, v38', lambda x, t, n: f'v_mul_f32 v{t}, v{t}, v{x}', lambda x, t, n: f'v_exp_f32 v{t}, v{t}',
                  lambda x, t, n: f'v_add_f32 v{t}, 1.0, v{t}', lambda x, t, n: f'v_rcp_f32 v{t}, v{t}', lambda x, t, n: f'v_mul_f32 v{x}, v{x}, v{t}']
            for f in st:
                for n in range(8): c.append(f(R[n], Tm[n], n))
            for q in range(2):
                r = facc(fb, qb + q)[1]
                c += [f'v_cvt_pk_bf16_f32 v{r}, v{r}, v{r+1}', f'v_cvt_pk_bf16_f32 v{r+1}, v{r+2}, v{r+3}']
    c += ['s_lshr_b32 s3, s74, 17', f's_mul_i32 s8, s3, {AF_TILE}', 's_lshr_b32 s3, s4, 1', 's_lshl_b32 s3, s3, 12', 's_add_u32 s8, s8, s3', f's_add_u32 s8, s8, {AF_OFF + 128*8192}',
          's_mul_i32 s9, s5, 3']
    for fb in range(3):
        c += [f's_add_u32 s10, s9, {fb}', 's_lshr_b32 s3, s10, 1', 's_lshl_b32 s3, s3, 13', 's_add_u32 s3, s3, s8', 's_and_b32 s11, s10, 1', 's_lshl_b32 s11, s11, 3', 's_add_u32 s3, s3, s11',
              's_cmp_lt_u32 s10, 86', f's_cselect_b32 s3, s3, {OOB}']
        for qb in range(4):
            r = facc(fb, qb)[1]
            c.append(I(f'buffer_store_dwordx2 v[{r}:{r+1}], v2, {SWS}, s3 offen offset:{qb*1024} sc1', tok='H'))
    c += ['s_lshl_b32 s3, s7, 13', f'v_add_u32 {vCUR}, s3, v2', f'v_xor_b32 {vNXT}, 0x10000, {vCUR}',
          's_lshr_b32 s3, s4, 1', 's_sub_u32 s3, s7, s3', 's_lshl_b32 s3, s3, 6', 'v_lshrrev_b32 v38, 4, v1', 'v_lshlrev_b32 v38, 2, v38', 'v_and_b32 v39, 15, v1',
          'v_sub_u32 v38, v38, v39', f'v_add_u32 {vDEL}, s3, v38', f'v_mov_b32 {vNEG}, 0xff800000',
          f's_mov_b32 s94, {f2u(2.0**30)}', 's_mov_b32 s91, 0', 's_sub_u32 s92, 15, s6']
    return c

def kread(g, t, kb, ds, g0, p):
    x = g0 + t
    return x
def frag_read(kind, step, idx, g, it, g0):
    m2 = it & ~1
    rel = step - m2
    reg = vCUR if rel in (0, 1) else vNXT
    off = (rel & 1) * 16384 + (32768 if kind == 'V' else 0) + idx * 1024
    x = g0 + step
    lb = kslot(x) + (32768 if kind == 'V' else 0)
    return I(f'ds_read_b128 v[{FR(g)}:{FR(g)+3}], {reg} offset:{off}', ldsr=((lb, lb + 16384), f'{kind}{x}'))
def qk_group(b, kb, ds, g, czero=False):
    r = []
    for qb in range(4):
        D = vr('v', Sreg(b, kb, qb), 4)
        C = D if ds > 0 else ('0' if czero else vr('v', NM(qb), 4))
        r.append(f'{MF} {D}, v[{FR(g)}:{FR(g)+3}], a[{Qreg(ds, qb)}:{Qreg(ds, qb)+3}], {C}')
    return r
def pv_group(b, db, g):
    r = []
    for qb in range(4):
        D = vr('a', Oreg(db, qb), 4)
        r.append(f'{MF} {D}, v[{FR(g)}:{FR(g)+3}], v[{Preg(b, qb)}:{Preg(b, qb)+3}], {D}')
    return r
def softmax_ops(b):
    E = []; A = []; C = []
    for e in range(32):
        qb = e >> 3; s = Sreg(b, 0, qb) + (e & 7); t = TMP + (e & 15)
        E.append(f'v_exp_f32 v{t}, v{s}')
        src = Lr(1 - b, qb) if (e & 7) == 0 else Lr(b, qb)
        A.append(f'v_add_f32 v{Lr(b, qb)}, v{src}, v{t}')
        if e & 1: C.append(f'v_cvt_pk_bf16_f32 v{Preg(b, qb) + ((e & 7) >> 1)}, v{t-1}, v{t}')
    return E, A, C
def check_ops(b, site):
    return [f'v_max3_f32 v236, v{Lr(b,0)}, v{Lr(b,1)}, v{Lr(b,2)}', f'v_max_f32 v236, v236, v{Lr(b,3)}', 'v_cmp_lt_f32 vcc, s94, v236',
            f's_cbranch_vccnz L_rare_{site}', f'L_rare_ret_{site}:']
def stream_adv(base):
    o, n, o2, n2 = base, base + 1, base + 2, base + 3
    return [f's_add_u32 s{o}, s{o}, 65536', f's_sub_u32 s{n}, s{n}, 1', f's_cmp_eq_u32 s{n}, 0', f's_cselect_b32 s{o}, s{o2}, s{o}', f's_cselect_b32 s{n}, s{n2}, s{n}',
            f's_cselect_b32 s{o2}, {OOB}, s{o2}', f's_cselect_b32 s{n2}, -1, s{n2}']

def att_iter(t, g0, qk=True, pv=True, sm=True, nxt_qk=True, nxt_pv=True, site=None, extra_need=(), post_bar=(), dma=True, ntot=99):
    p = t & 1
    groups = []
    for n in range(8):
        if qk: groups.append(('K', n, 2 * n))
        if pv: groups.append(('V', n, 2 * n + 1))
    look = []
    if nxt_qk: look.append(('K', t + 2, 0, 0))
    if nxt_pv: look.append(('V', t, 0, 1))
    if nxt_qk: look.append(('K', t + 2, 1, 2))
    if not nxt_qk and nxt_pv: look += [('V', t, 1, 3)]
    have = 3 if (qk and pv) else 2
    mf = []
    for kind, n, g in groups:
        mf += qk_group(1 - p, n >> 2, n & 3, g) if kind == 'K' else pv_group(1 - p, n, g)
    NG = len(groups); NM_ = len(mf)
    fill = {g: [] for g in range(NM_)}
    need = {('L', f'K{g0+t+2}'), ('L', f'V{g0+t}')} | set(extra_need)
    fill[0] += [Wt(vm=need), 's_barrier'] + list(post_bar)
    reads = [frag_read(k, (t + 1) if k == 'K' else (t - 1), n, g, t, g0) for (k, n, g) in groups[have:]]
    reads += [frag_read(k, st_, n, g, t, g0) for (k, st_, n, g) in look]
    for gi in range(NG):
        if gi < len(reads): fill[4 * gi + 1].append(reads[gi])
        nx = groups[gi + 1][2] if gi + 1 < NG else (look[0][3] if look else None)
        if nx is not None: fill[4 * gi + 3].append(Wt(lg=rs('v', FR(nx), 4)))
    for x in reads[NG:]:
        fill[NM_ - 2].append(x)
    if dma:
        step = NM_ // 8
        gl = [step * n + step - 1 for n in range(8)]
        for half, (kind, x, sb, so) in enumerate((('K', g0 + t + 4, 's80', 's82'), ('V', g0 + t + 2, 's81', 's86'))):
            lo = p * 16384 + (32768 if kind == 'V' else 0)
            lb = kslot(x) + (32768 if kind == 'V' else 0)
            g = gl[4 * half]
            fill[g - 1] += [f's_add_u32 m0, {sb}, {lo}', f's_add_u32 s95, {so}, {p * 16384}']
            for j in range(4):
                fill[gl[4 * half + j]].append(I(f'buffer_load_dwordx4 v2, {SWS}, s95 offen offset:{j*1024} sc1 lds', tok=f'{kind}{x}', ldsw=((lb, lb + 16384), f'{kind}{x}')))
        if p == 1:
            a1 = stream_adv(82); a2 = stream_adv(86)
            g = gl[4] + 1
            for n, x in enumerate(a1): fill[g + n].append(x)
            tail_salu = a2 + ['s_xor_b32 s80, s80, 0x10000', 's_xor_b32 s81, s81, 0x10000']
        else: tail_salu = []
    else: tail_salu = []
    tail = []
    if sm:
        E, A, C = softmax_ops(p)
        if NM_ == 64:
            for e in range(32):
                fill[2 * e].append(E[e]); fill[2 * e + 1].append(A[e])
                if e & 1: fill[2 * e + 1].append(C[e >> 1])
        else:
            for e in range(32):
                fill[e].append(E[e])
                if e > 0:
                    fill[e].append(A[e - 1])
                    if (e - 1) & 1: fill[e].append(C[(e - 1) >> 1])
            tail += ['s_nop 0', A[31], C[15]]
    out = gaps(mf, fill) + [I(x) for x in tail]
    if p == 1: out += [I(f'v_xor_b32 {vCUR}, 0x10000, {vCUR}'), I(f'v_xor_b32 {vNXT}, 0x10000, {vNXT}')]
    out += [I(x) for x in tail_salu]
    if sm: out += [I(x) for x in check_ops(p, site)]
    return out

def mask_ops(b, e):
    c = []
    n = 0
    for qb in range(4):
        for kb in range(2):
            for r in range(4):
                k = 16 * qb - 16 * kb - 32 * e - r
                sp = ['s[8:9]', 's[10:11]', 's[12:13]', 's[14:15]'][n & 3]
                c.append((k, sp, Sreg(b, kb, qb) + r)); n += 1
    out = []
    def cmp(k, sp):
        if -16 <= k <= 64: return [f'v_cmp_lt_i32 {sp}, {k}, {vDEL}']
        return [f's_mov_b32 s3, {k}', f'v_cmp_lt_i32 {sp}, s3, {vDEL}']
    for i in range(len(c) + 3):
        if i < len(c): out += cmp(c[i][0], c[i][1])
        if i == len(c): out += ['s_nop 0']
        if i >= 3: out += [f'v_cndmask_b32 v{c[i-3][2]}, v{c[i-3][2]}, {vNEG}, {c[i-3][1]}']
    return out
def rowmax(b, dst):
    c = []
    for qb in range(4):
        s = Sreg(b, 0, qb)
        c += [f'v_max3_f32 v{dst+qb}, v{s}, v{s+1}, v{s+2}']
    for j in (3, 5):
        for qb in range(4):
            s = Sreg(b, 0, qb); c += [f'v_max3_f32 v{dst+qb}, v{dst+qb}, v{s+j}, v{s+j+1}']
    for qb in range(4):
        s = Sreg(b, 0, qb); c += [f'v_max_f32 v{dst+qb}, v{dst+qb}, v{s+7}']
    c += xlane('v_max_f32', dst)
    return c
def xlane(op, dst):
    c = []
    for pl in ('v_permlane16_swap_b32', 'v_permlane32_swap_b32'):
        for qb in range(4): c += [f'v_mov_b32 v{dst+4+qb}, v{dst+qb}']
        for qb in range(4): c += [f'{pl} v{dst+4+qb}, v{dst+qb}']
        for qb in range(4): c += [f'{op} v{dst+qb}, v{dst+qb}, v{dst+4+qb}']
    return c

def att_pre(g0):
    c = ['L_tile:', Wt(vm={('L', f'K{g0}'), ('L', f'K{g0+1}')}, lg={'ALL'}), 's_barrier']
    rd = [frag_read('K', 0, n, n, 0, g0) for n in range(8)]
    c += rd
    mf = []
    for n in range(8): mf += qk_group(0, n >> 2, n & 3, n, czero=True)
    fill = {g: [] for g in range(32)}
    z = [f'v_accvgpr_write_b32 a{r}, 0' for r in range(128)]
    for g in range(32): fill[g] += z[2 * g:2 * g + 2]
    for n in range(1, 8): fill[4 * n - 1].append(Wt(lg=rs('v', FR(n), 4)))
    fill[17].append(frag_read('K', 1, 0, 0, 0, g0)); fill[21].append(frag_read('K', 1, 1, 2, 0, g0))
    c += [Wt(lg=rs('v', FR(0), 4))] + gaps(mf, fill) + z[64:]
    for qb in range(4): c += [f'v_mov_b32 v{Lr(1, qb)}, 0']
    c += ['s_cmp_eq_u32 s92, 0', 's_cbranch_scc1 L_mask_pre', 'L_mask_pre_ret:']
    c += rowmax(0, TMP)
    for qb in range(4): c += [f'v_max_f32 v{TMP+qb}, {f2u(-3.0e38)}, v{TMP+qb}']
    for qb in range(4):
        for r in range(4): c += [f'v_sub_f32 v{NM(qb)+r}, 0, v{TMP+qb}']
        for j in range(8): c += [f'v_sub_f32 v{Sreg(0,0,qb)+j}, v{Sreg(0,0,qb)+j}, v{TMP+qb}']
    c += ['s_mov_b32 s90, s92', Wt(lg=rs('v', FR(0), 4))]
    return c

def rare(p):
    c = [f'L_rare{p}:', 's_nop 7']
    c += rowmax(p, TMP)
    for qb in range(4): c += [f'v_max_f32 v{TMP+qb}, 0, v{TMP+qb}']
    for qb in range(4): c += [f'v_exp_f32 v{TMP+4+qb}, -v{TMP+qb}']
    for qb in range(4):
        for r in range(4): c += [f'v_sub_f32 v{NM(qb)+r}, v{NM(qb)+r}, v{TMP+qb}']
        for b in range(2):
            for j in range(8): c += [f'v_sub_f32 v{Sreg(b,0,qb)+j}, v{Sreg(b,0,qb)+j}, v{TMP+qb}']
        c += [f'v_mul_f32 v{Lr(1-p, qb)}, v{Lr(1-p, qb)}, v{TMP+4+qb}']
    for db in range(8):
        for qb in range(4):
            o = Oreg(db, qb)
            for r in range(4): c += [f'v_accvgpr_read_b32 v{TMP+8+r}, a{o+r}']
            for r in range(4): c += [f'v_mul_f32 v{TMP+8+r}, v{TMP+8+r}, v{TMP+4+qb}']
            for r in range(4): c += [f'v_accvgpr_write_b32 a{o+r}, v{TMP+8+r}']
    E, A, C = softmax_ops(p)
    for e0 in range(0, 32, 8):
        c += E[e0:e0 + 8] + ['s_nop 0'] + A[e0:e0 + 8] + C[e0 // 2:e0 // 2 + 4]
    c += ['s_nop 1']
    a, b = (('first', 'mid0') if p == 0 else ('mid1', 'last'))
    c += ['s_cmp_eq_u32 s93, 0', f's_cbranch_scc1 L_rare_ret_{a}', f's_branch L_rare_ret_{b}']
    c += [f'L_rare_{a}:', 's_mov_b32 s93, 0', f's_branch L_rare{p}', f'L_rare_{b}:', 's_mov_b32 s93, 1', f's_branch L_rare{p}']
    return c

def att_stats(tile):
    c = []
    for qb in range(4): c += [f'v_mov_b32 v{TMP+qb}, v{Lr(1, qb)}']
    c += xlane('v_add_f32', TMP)
    for qb in range(4): c += [f'v_mov_b32 v{TMP+4+qb}, v{NM(qb)}']
    c += ['s_lshl_b32 s3, s4, 11', 's_add_u32 s3, s3, 131072', 'v_add_u32 v237, s3, v2', 'v_xor_b32 v238, 2048, v237']
    c += [I(f'ds_write_b128 v237, v[{TMP}:{TMP+3}]', ldsw=((131072, 139264), f'ST{tile}'), tok='ST'), I(f'ds_write_b128 v237, v[{TMP+4}:{TMP+7}] offset:1024', ldsw=((131072, 139264), f'ST{tile}'), tok='ST')]
    c += [Wt(lg={('L', 'ST')})]
    return c
def att_drain(n, g0, tile):
    t = n
    groups = [('V', k, 2 * k + 1) for k in range(8)]
    mf = []
    for kind, k, g in groups: mf += pv_group(1, k, g)
    fill = {g: [] for g in range(32)}
    fill[0] += ['s_barrier']
    reads = [frag_read('V', t - 1, k, g, t, g0) for (_, k, g) in groups[2:]]
    for gi in range(8):
        if gi < len(reads): fill[4 * gi + 1].append(reads[gi])
        if gi + 1 < 8: fill[4 * gi + 3].append(Wt(lg=rs('v', FR(groups[gi + 1][2]), 4)))
    fill[2] += [I('ds_read_b128 v[64:67], v238', ldsr=((131072, 139264), f'ST{tile}'))]
    fill[3] += [I('ds_read_b128 v[68:71], v238 offset:1024', ldsr=((131072, 139264), f'ST{tile}'))]
    fill[8] += [Wt(lg=rs('v', 64, 8))]
    w = []
    for qb in range(4): w += [f'v_min_f32 v{72+qb}, v{TMP+4+qb}, v{68+qb}']
    for qb in range(4): w += [f'v_sub_f32 v{76+qb}, v{72+qb}, v{TMP+4+qb}', f'v_sub_f32 v{80+qb}, v{72+qb}, v{68+qb}']
    for qb in range(4): w += [f'v_exp_f32 v{76+qb}, v{76+qb}', f'v_exp_f32 v{80+qb}, v{80+qb}']
    for qb in range(4): w += [f'v_mul_f32 v{72+qb}, v{76+qb}, v{TMP+qb}']
    for qb in range(4): w += [f'v_fmac_f32 v{72+qb}, v{80+qb}, v{64+qb}']
    for qb in range(4): w += [f'v_rcp_f32 v{72+qb}, v{72+qb}']
    for qb in range(4): w += [f'v_mul_f32 v{TMP+8+qb}, v{76+qb}, v{72+qb}', f'v_mul_f32 v{TMP+12+qb}, v{80+qb}, v{72+qb}']
    for n_, x in enumerate(w): fill[9 + n_ // 2].append(x)
    c = gaps(mf, fill)
    c += [I(x) for x in ['s_and_b32 s3, s81, 0x10000', 's_add_u32 s3, s3, 32768', 's_cmp_lt_u32 s4, 2', 's_cselect_b32 s3, 131072, s3', 's_lshl_b32 s8, s7, 14', 's_add_u32 s3, s3, s8',
          'v_add_u32 v237, s3, v2', 'v_xor_b32 v238, 16384, v237',
          f's_mul_i32 s8, s92, {AF_TILE}', 's_lshl_b32 s9, s5, 15', 's_add_u32 s8, s8, s9', 's_lshl_b32 s9, s7, 14', 's_add_u32 s8, s8, s9',
          's_lshr_b32 s9, s4, 1', 's_lshl_b32 s9, s9, 12', 's_add_u32 s8, s8, s9', f's_add_u32 s8, s8, {AF_OFF}', 's_add_u32 s9, s8, 8192']]
    c += [Wt(lg={'ALL'}), I('s_barrier'), I('s_cmp_eq_u32 s7, 1'), I('s_cbranch_scc1 L_epi_1')]
    return c
def att_epi(cc, n, g0, tile):
    vb = kslot(g0 + n - 2) + 32768
    c = [f'L_epi_{cc}:']
    for q in range(16):
        o = (1 - cc) * 64 + 4 * q
        c.append(I(f'ds_write_b128 v237, a[{o}:{o+3}] offset:{q*1024}', ldsw=[((131072, 163840), f'OX{tile}'), ((vb, vb + 32768), f'OY{tile}')]))
    for q in range(16):
        for r in range(4): c += [f'v_accvgpr_read_b32 v{128+4*q+r}, a{cc*64+4*q+r}']
    c += [Wt(lg={'ALL'}), 's_barrier']
    for q in range(16):
        c.append(I(f'ds_read_b128 v[{64+4*q}:{67+4*q}], v238 offset:{q*1024}', ldsr=[((131072, 163840), f'OX{tile}'), ((vb, vb + 32768), f'OY{tile}')]))
    for q in range(16):
        for r in range(4): c += [f'v_mul_f32 v{128+4*q+r}, v{128+4*q+r}, v{TMP+8+(q&3)}']
    for dsl in range(2):
        for qb in range(4):
            qa, qb2 = (2 * dsl) * 4 + qb, (2 * dsl + 1) * 4 + qb
            c += [Wt(lg=rs('v', 64 + 4 * qa, 4) | rs('v', 64 + 4 * qb2, 4))]
            for q in (qa, qb2):
                for r in range(4): c += [f'v_fmac_f32 v{128+4*q+r}, v{64+4*q+r}, v{TMP+12+qb}']
            d = 128 + 4 * qa; e = 128 + 4 * qb2
            c += [f'v_cvt_pk_bf16_f32 v{d}, v{d}, v{d+1}', f'v_cvt_pk_bf16_f32 v{d+1}, v{d+2}, v{d+3}', f'v_cvt_pk_bf16_f32 v{d+2}, v{e}, v{e+1}', f'v_cvt_pk_bf16_f32 v{d+3}, v{e+2}, v{e+3}']
            c.append(I(f'buffer_store_dwordx4 v[{d}:{d+3}], v2, {SWS}, s{8+dsl} offen offset:{qb*1024} sc1', tok=f'CTX{tile}'))
    if cc == 0: c += ['s_branch L_epi_done']
    return c
def att_next():
    c = ['L_epi_done:', 's_cmp_eq_u32 s91, 1', 's_cbranch_scc1 L_att_done']
    for r in range(64): c += [f'v_accvgpr_mov_b32 a{128+r}, a{192+r}']
    c += ['s_mov_b32 s91, 1', 's_mov_b32 s96, s92', 's_mov_b32 s92, s6', 's_branch L_tile']
    return c

def p3_dma(pair, kk):
    lb = (pair % 5) * 32768 + kk * 16384
    meta = dict(tok=f'Z{pair}', ldsw=(((pair % 5) * 32768, (pair % 5) * 32768 + 32768), f'Z{pair}'))
    W = [['s_lshl_b32 s75, s68, 15', 's_add_u32 s76, s75, s70', f's_add_u32 m0, s71, {kk*16384}', 's_cmp_lt_u32 s68, s67', f's_cselect_b32 s76, s76, {OOB}',
          I(f'buffer_load_dwordx4 v4, {SA}, s76 offen lds', **meta)],
         [I(f'buffer_load_dwordx4 v5, {SA}, s76 offen offset:1024 lds', **meta)]]
    A = [['s_lshl_b32 s75, s68, 13', 's_add_u32 s76, s75, s69', f's_add_u32 m0, s71, {kk*16384+8192}', 's_cmp_lt_u32 s68, s67', f's_cselect_b32 s76, s76, {OOB}', 's_add_u32 s68, s68, 1',
          I(f'buffer_load_dwordx4 v2, {SWS}, s76 offen sc1 lds', **meta)],
         [I(f'buffer_load_dwordx4 v2, {SWS}, s76 offen offset:1024 sc1 lds', **meta)]]
    return W, A
def fixscc(items):
    return items
def p3_reads(k):
    s = k & 1; pair = k >> 1; o = (k & 1) * 16384
    rng = ((pair % 5) * 32768, (pair % 5) * 32768 + 32768)
    r = []
    for n in range(4):
        d = 32 * s + 16 + 4 * n
        r.append(I(f'ds_read_b128 a[{d}:{d+3}], v16 offset:{o + 8192 + n*1024}', ldsr=(rng, f'Z{pair}')))
    for n in range(4):
        for e2 in range(2):
            d = 32 * s + 4 * n + 2 * e2
            r.append(I(f'ds_read_b64_tr_b16 a[{d}:{d+1}], v{12+n} offset:{o + e2*4096}', ldsr=(rng, f'Z{pair}')))
    return r
def p3_waits(fill, base, k):
    s = k & 1
    for n in range(1, 4): fill[base + 4 * n - 1].append(Wt(lg=rs('a', 32 * s + 4 * n, 4)))
def p3_w0(k):
    s = k & 1
    return Wt(lg=rs('a', 32 * s + 16, 16) | rs('a', 32 * s, 4))
def p3_mf(k, czero=False):
    s = k & 1; mf = []
    for mb in range(4):
        for qb in range(4):
            D = vr('v', 64 + 16 * qb + 4 * mb, 4)
            mf.append(f'{MF} {D}, a[{32*s+4*mb}:{32*s+4*mb+3}], a[{32*s+16+4*qb}:{32*s+16+4*qb+3}], {"0" if czero else D}')
    return mf
def p3_pre():
    c = ['L_att_done:']
    c += ['s_and_b32 s8, s2, 7', 's_lshr_b32 s9, s2, 3', 's_lshr_b32 s64, s8, 1', 's_and_b32 s8, s8, 1', 's_lshl_b32 s8, s8, 3', 's_lshr_b32 s65, s9, 2', 's_add_u32 s65, s65, s8', 's_and_b32 s66, s9, 3']
    c += ['s_cmp_eq_u32 s64, 2', 's_cselect_b32 s67, 42, 43', 's_mul_i32 s8, s64, 43', 's_lshl_b32 s70, s8, 15', 's_mov_b32 s46, 0x400000', 's_cmp_eq_u32 s64, 3', 's_cselect_b32 s8, 128, s8',
          f's_cselect_b32 s44, s{pW2}, s{pWO}', f's_cselect_b32 s45, s{pW2+1}, s{pWO+1}', f's_cselect_b32 s46, {1376*1024}, s46', 's_cselect_b32 s70, 0, s70', 's_mov_b32 s47, 0x00020000']
    c += [f's_mul_i32 s69, s65, {AF_TILE}', 's_lshl_b32 s8, s8, 13', 's_add_u32 s69, s69, s8', 's_lshl_b32 s74, s4, 11', 's_add_u32 s69, s69, s74', f's_add_u32 s69, s69, {AF_OFF}']
    c += ['s_lshl_b32 s8, s4, 13', 's_lshl_b32 s9, s66, 8', 's_add_u32 s8, s8, s9', 'v_lshrrev_b32 v28, 4, v1', 'v_and_b32 v29, 15, v1',
          'v_lshlrev_b32 v30, 1, v28', 'v_xor_b32 v30, v30, v29', 'v_lshlrev_b32 v30, 4, v30', 'v_lshl_add_u32 v31, v28, 10, s8', 'v_add_u32 v4, v31, v30',
          'v_xor_b32 v30, 128, v30', 'v_add_u32 v5, v31, v30', f'v_add_u32 v5, {4*1024-1024}, v5']
    c += ['v_lshrrev_b32 v30, 2, v1', 'v_and_b32 v31, 7, v30', 'v_lshlrev_b32 v30, 8, v30', 'v_and_b32 v32, 3, v1', 'v_lshl_add_u32 v30, v32, 3, v30',
          's_lshr_b32 s8, s4, 1', 's_lshl_b32 s8, s8, 2', 'v_xor_b32 v31, s8, v31']
    for mb in range(4): c += [f'v_xor_b32 v32, {mb}, v31', f'v_lshl_add_u32 v{6+mb}, v32, 5, v30', f'v_mov_b32 v{12+mb}, v{6+mb}']
    c += ['s_lshl_b32 s8, s7, 12', 'v_add_u32 v10, s8, v2', 'v_mov_b32 v16, v10']
    c += [Wt(vm={'ALL'}, lg={'ALL'}), 's_barrier', 's_cmp_eq_u32 s4, 0', 's_cbranch_scc1 L_sigB', 'L_sigB_ret:']
    if STOP == 'att': c += ['s_endpgm']
    c += ['s_sub_u32 s8, 15, s65', 's_min_u32 s8, s8, s65', f's_add_u32 s8, s8, {F_H}', f's_add_u32 s9, s65, {F_CTX}', 's_cmp_eq_u32 s64, 3', 's_cselect_b32 s78, s8, s9', 's_lshl_b32 s78, s78, 2']
    for part in range(2):
        c += ['s_mov_b32 s68, 0']
        if part == 1: c += ['s_branch L_poll3', 'L_poll3_ret:']
        for pair in range(5):
            c += [f's_add_u32 s71, s74, {pair * 32768}']
            for kk in range(2):
                W, A = p3_dma(pair, kk)
                for it in (W if part == 0 else A): c += it
                if part == 0: c += ['s_add_u32 s68, s68, 1']
    c += ['s_mov_b32 s71, s74', 's_mov_b32 s72, 0', 's_mov_b32 s73, 21']
    c += [Wt(vm={('L', 'Z0')}), 's_barrier'] + p3_reads(0) + [Wt(lg={'ALL'})]
    mf = p3_mf(0, czero=True)
    fill = {g: [] for g in range(16)}
    for n, x in enumerate(p3_reads(1)): fill[n + 1].append(x)
    fill[15].append(p3_w0(1))
    c += gaps(mf, fill)
    return c
def p3_body(w):
    mf = p3_mf(2 * w + 1) + p3_mf(2 * w + 2)
    fill = {g: [] for g in range(32)}
    fill[0] += [Wt(vm={('L', f'Z{w+1}')}, lg={'ALL'}), 's_barrier', 's_add_u32 s72, s72, 32768', 's_cmp_eq_u32 s72, 163840', 's_cselect_b32 s72, 0, s72']
    pre = [f'v_add_u32 v{12+n}, s72, v{6+n}' for n in range(4)] + ['v_add_u32 v16, s72, v10']
    fill[0] += pre[:2]; fill[1] += pre[2:4]; fill[2] += pre[4:]
    R1 = p3_reads(2 * w + 2); R2 = p3_reads(2 * w + 3)
    items = []
    for kk in range(2):
        W, A = p3_dma(w + 5, kk); items += W + A
    for g, x in zip(range(3, 15), R1): fill[g].append(x)
    for g, x in zip(range(16, 28), R2): fill[g].append(x)
    for g, it in zip([1, 2, 15, 28, 29, 30, 31, 31], items):
        for x in it: fill[g].append(x)
    p3_waits(fill, 0, 2 * w + 1); fill[15].append(p3_w0(2 * w + 2)); p3_waits(fill, 16, 2 * w + 2); fill[31].insert(0, p3_w0(2 * w + 3))
    fill[31] = [fill[31][0]] + [I(x) if isinstance(x, str) else x for x in fill[31][1:]]
    fill[31][0].meta['keep'] = True
    c = ['L_p3loop:'] + gaps(mf, fill)
    c += ['s_add_u32 s71, s71, 32768', 's_sub_u32 s3, s71, s74', 's_cmp_eq_u32 s3, 163840', 's_cselect_b32 s71, s74, s71',
          's_sub_u32 s73, s73, 1', 's_cmp_lg_u32 s73, 0', 's_cbranch_scc1 L_p3loop']
    return c
def p3_epi():
    c = []
    c += ['s_lshl_b32 s8, s65, 2', 's_add_u32 s8, s8, s66', 's_lshl_b32 s9, s8, 18', f's_add_u32 s9, s9, {PART_OFF}', 's_lshl_b32 s10, s4, 12', 's_add_u32 s9, s9, s10',
          's_lshl_b32 s10, s64, 14', 's_add_u32 s10, s10, s9', 's_lshl_b32 s11, s64, 16', 's_add_u32 s11, s11, s9']
    c += ['s_lshr_b32 s78, s8, 2', 's_lshl_b32 s78, s78, 2', f's_add_u32 s78, s78, {F_P3*4}', 's_and_b32 s79, s8, 3', 's_lshl_b32 s79, s79, 3', 's_lshl_b32 s77, 1, s79']
    for qb in range(4):
        for mb in range(4):
            r = 64 + 16 * qb + 4 * mb
            c.append(I(f'buffer_store_dwordx4 v[{r}:{r+3}], v2, {SWS}, s10 offen offset:{mb*1024} sc1', tok='PART'))
        c += ['s_add_u32 s10, s10, 65536']
    c += srd(44, pX, 0x200000) + srd(48, pB2, 1024) + srd(60, pOUT, 0x200000)
    c += ['s_lshl_b32 s12, s65, 7', 's_lshl_b32 s13, s7, 6', 's_add_u32 s12, s12, s13', 's_lshl_b32 s13, s64, 4', 's_add_u32 s12, s12, s13', 's_lshl_b32 s12, s12, 10',
          's_lshl_b32 s13, s66, 8', 's_lshr_b32 s14, s4, 1', 's_lshl_b32 s14, s14, 7', 's_add_u32 s13, s13, s14', 's_add_u32 s12, s12, s13',
          'v_lshlrev_b32 v30, 3, v28', 'v_lshl_add_u32 v31, v29, 10, v30']
    for mb in range(4):
        c += [f'buffer_load_dwordx2 v[{32+2*mb}:{33+2*mb}], v31, {SA}, s12 offen offset:{mb*32}', f'buffer_load_dwordx2 v[{40+2*mb}:{41+2*mb}], v30, {SB}, s13 offen offset:{mb*32}']
    c += [Wt(vm={('L', 'PART')}), 's_barrier', 's_cmp_eq_u32 s4, 0', 's_cbranch_scc1 L_sig3', 'L_sig3_ret:', 's_branch L_poll4', 'L_poll4_ret:']
    for src in range(4):
        for mb in range(4):
            r = 128 + 16 * src + 4 * mb
            c += [f'buffer_load_dwordx4 v[{r}:{r+3}], v2, {SWS}, s11 offen offset:{mb*1024} sc1']
        c += ['s_add_u32 s11, s11, 16384']
    c += [Wt(vm=rs('v', 32, 16))]
    for mb in range(4):
        for j in range(2):
            c += [f'v_lshlrev_b32 v{64+4*mb+2*j}, 16, v{32+2*mb+j}', f'v_and_b32 v{65+4*mb+2*j}, 0xffff0000, v{32+2*mb+j}',
                  f'v_lshlrev_b32 v{80+4*mb+2*j}, 16, v{40+2*mb+j}', f'v_and_b32 v{81+4*mb+2*j}, 0xffff0000, v{40+2*mb+j}']
    c += [Wt(vm=rs('v', 128, 32))]
    for n in range(16): c += [f'v_add_f32 v{128+n}, v{128+n}, v{144+n}']
    c += [Wt(vm=rs('v', 160, 16))]
    for n in range(16): c += [f'v_add_f32 v{128+n}, v{128+n}, v{160+n}']
    c += [Wt(vm=rs('v', 176, 16))]
    for n in range(16): c += [f'v_add_f32 v{176+n}, v{176+n}, v{80+n}']
    for n in range(16): c += [f'v_mul_f32 v{144+n}, {f2u(-LOG2E)}, v{176+n}']
    for n in range(16): c += [f'v_exp_f32 v{144+n}, v{144+n}']
    for n in range(16): c += [f'v_add_f32 v{144+n}, 1.0, v{144+n}']
    for n in range(16): c += [f'v_rcp_f32 v{144+n}, v{144+n}']
    for n in range(16): c += [f'v_mul_f32 v{144+n}, v{144+n}, v{176+n}']
    for n in range(16): c += [f'v_fmac_f32 v{64+n}, v{128+n}, v{144+n}']
    for mb in range(4):
        c += [f'v_cvt_pk_bf16_f32 v{32+2*mb}, v{64+4*mb}, v{65+4*mb}', f'v_cvt_pk_bf16_f32 v{33+2*mb}, v{66+4*mb}, v{67+4*mb}',
              f'buffer_store_dwordx2 v[{32+2*mb}:{33+2*mb}], v31, {SC}, s12 offen offset:{mb*32}']
    c += ['L_end:', 's_endpgm']
    return c

def build():
    b0 = blk('p0', p0())
    tr_p1 = {}
    for wc in range(2):
        t = [blk(f'p1pre{wc}', p1_pre(wc))]
        blk(f'p1lab{wc}', [f'L_p1loop_{wc}:'])
        for q in range(4): P.add(f'p1k{wc}_{q}', p1_kstep(q, wc, False))
        P.add(f'p1be{wc}', p1_backedge(wc))
        for k in range(12):
            t.append(P.inst(f'p1k{wc}_{k&3}', p1_kstep(k, wc, False)))
            if k & 3 == 3: t.append(P.inst(f'p1be{wc}', p1_backedge(wc)))
        for k in range(12, 16): t.append(blk(f'p1k{wc}_{k}', p1_kstep(k, wc, True)))
        if wc == 0: blk('p1j', ['s_branch L_p1_done'])
        tr_p1[wc] = t
    mid = [blk('trans12', trans12())]
    for k in range(16): mid.append(blk(f'p2a{k}', p2a_kstep(k)))
    mid.append(blk('p2aepi', p2a_epi()))
    if STOP == 'p2a': blk('stop', ['s_waitcnt vmcnt(0)', 's_endpgm'])
    sigA = [I('s_lshl_b32 s3, s4, 1', keep=True), 's_sub_u32 s3, s91, s3', 's_cmp_eq_u32 s3, 1', 's_cbranch_scc1 L_sigA', 'L_sigA_ret:']
    def first(g0, tile): return att_iter(0, g0, pv=False, site='first', extra_need=({('L', 'H'), ('L', 'CTX0')} if tile else ()), post_bar=sigA) + [I('s_cmp_eq_u32 s90, 0'), I('s_cbranch_scc1 L_last')]
    def mid1(t, g0): return [I('L_loop:')] + att_iter(t, g0, site='mid1') + [I('s_sub_u32 s90, s90, 1'), I('s_cmp_eq_u32 s90, 0'), I('s_cbranch_scc1 L_mask0'), I('L_mask0_ret:')]
    def mid0(t, g0): return att_iter(t, g0, site='mid0') + [I('s_cmp_lg_u32 s90, 0'), I('s_cbranch_scc1 L_loop')]
    def last(t, g0): return [I('L_last:'), frag_read('V', t - 1, 1, 3, t, g0), I('s_nop 3')] + [I(x) for x in mask_ops(1, 1)] + [Wt(lg=rs('v', FR(1), 4))] + att_iter(t, g0, qk=False, nxt_qk=False, site='last')
    P.add('pre', att_pre(0)); P.add('first', first(0, 0)); P.add('mid1', mid1(1, 0)); P.add('mid0', mid0(2, 0)); P.add('last', last(3, 0))
    P.add('stats', att_stats(0)); P.add('drain', att_drain(4, 0, 0)); P.add('epi0', att_epi(0, 4, 0, 0)); P.add('epi1', att_epi(1, 4, 0, 0)); P.add('next', att_next())
    m0 = ['L_mask0:', 's_nop 3'] + mask_ops(0, 0) + ['s_branch L_mask0_ret']
    mp = ['L_mask_pre:'] + mask_ops(0, 0) + ['s_branch L_mask_pre_ret']
    def tile(n, g0, tl, cc):
        t = []
        pre = P.inst('pre', att_pre(g0)); t.append(pre)
        t.append(P.inst('first', first(g0, tl)))
        it = 1
        while it < n - 1:
            t.append(P.inst('mid1', mid1(it, g0)))
            if it == n - 3: t.append(('mask0', P.canon['mask0']))
            t.append(P.inst('mid0', mid0(it + 1, g0)))
            it += 2
        t.append(P.inst('last', last(n - 1, g0)))
        t += [P.inst('stats', att_stats(tl)), P.inst('drain', att_drain(n, g0, tl)), P.inst(f'epi{cc}', att_epi(cc, n, g0, tl)), P.inst('next', att_next())]
        return t
    p3 = [blk('p3pre', p3_pre())]
    P.add('p3body', p3_body(0))
    for w in range(21): p3.append(P.inst('p3body', p3_body(w)))
    p3.append(blk('p3epi', p3_epi()))
    P.add('mask0', m0); P.add('maskpre', mp); P.add('rare0', rare(0)); P.add('rare1', rare(1))
    ool = []
    for wc in range(2):
        ool += sig_stub(f'L_sigxn_{wc}', f'L_sigxn_ret_{wc}', '0', '1')
        ool += poll_stub(f'L_pollxn_{wc}', f'L_pollxn_ret_{wc}', '0', '0', '0xffff', '256')
    ool += ['L_sigkv:', 's_lshr_b32 s8, s5, 2', 's_lshl_b32 s8, s8, 2', f's_add_u32 s8, s8, {F_KV*4}', 's_and_b32 s9, s5, 3', 's_lshl_b32 s9, s9, 3', 's_lshl_b32 s9, 1, s9'] + sig_stub('L_sigkv2', 'L_sigkv_ret', 's8', 's9')
    ool += poll_stub('L_pollkv', 'L_pollkv_ret', 's78', 's79', '0xff', '8')
    ool += ['L_sigA:', 's_lshl_b32 s8, s96, 2', f's_add_u32 s8, s8, {F_CTX*4}', 's_lshl_b32 s9, s6, 2', f's_add_u32 s9, s9, {F_H*4}',
            's_mov_b64 s[98:99], exec', 's_mov_b64 exec, 1', 'v_mov_b32 v3, 1', f'buffer_atomic_add v3, off, {SDBG}, s8', f'buffer_atomic_add v3, off, {SDBG}, s9', 's_mov_b64 exec, s[98:99]', 's_branch L_sigA_ret']
    ool += ['L_sigB:', 's_lshl_b32 s8, s92, 2', f's_add_u32 s8, s8, {F_CTX*4}'] + sig_stub('L_sigB2', 'L_sigB_ret', 's8', '1')
    ool += poll_stub('L_poll3', 'L_poll3_ret', 's78', '0', '0xffff', '32')
    ool += sig_stub('L_sig3', 'L_sig3_ret', 's78', 's77')
    ool += poll_stub('L_poll4', 'L_poll4_ret', 's78', 's79', '0xff', '4')
    P.add('ool', ool)
    traces = []
    for wc, nA, nB in ((0, 6, 2), (1, 8, 4), (0, 4, 6), (1, 6, 6)):
        traces.append([b0] + tr_p1[wc] + mid + tile(nA, 0, 0, wc) + tile(nB, nA, 1, wc) + p3)
    P.resolve(traces)
    errs = P.check(traces)
    errs += P.check([[('rare0', P.canon['rare0'])], [('rare1', P.canon['rare1'])], [('maskpre', P.canon['maskpre'])], [('ool', P.canon['ool'])]])
    return errs

errs = build()
seen = set()
for e in errs:
    k = e.split(' ', 1)[1]
    if k not in seen:
        seen.add(k); print('ERR', e)
hdr = open('recurrent_scan__compressed_kv_cla__dense_activation_gelu__prompt.s.ref').read().split('; Override')[0]
s = hdr + '; @launch grid=(256,1,1) block=(256,1,1) lds=163840\n'
s += f'.amdgcn_target "amdgcn-amd-amdhsa--gfx950"\n.text\n.globl {NAME}\n.p2align 8\n.type {NAME},@function\n{NAME}:\n'
s += P.text()
s += f'''.section .rodata,"a"
.p2align 6
.amdhsa_kernel {NAME}
  .amdhsa_next_free_vgpr 512
  .amdhsa_next_free_sgpr 102
  .amdhsa_accum_offset 256
  .amdhsa_group_segment_fixed_size 0
  .amdhsa_kernarg_size 112
  .amdhsa_user_sgpr_count 2
  .amdhsa_user_sgpr_kernarg_segment_ptr 1
  .amdhsa_system_sgpr_workgroup_id_x 1
.end_amdhsa_kernel
'''
open(OUT, 'w').write(s)
print('written', OUT, len(s), 'bytes;', len(seen), 'errors')
```

```python
import sys, math, struct
from asmlib import *

STOP = None
for a in sys.argv[1:]:
    if a.startswith('stop='): STOP = a.split('=')[1]
TS = 'ts=1' in sys.argv
def stamp(j, dyn=False):
    if not TS: return []
    r = ['s_memrealtime s[98:99]', 's_waitcnt lgkmcnt(0)', 'v_mov_b32 v0, s98']
    if dyn: r += ['s_lshl_b32 s98, s91, 4', 's_add_u32 s98, s98, s101', f'buffer_store_dword v0, off, s[52:55], s98 offset:{4*j}']
    else: r += [f'buffer_store_dword v0, off, s[52:55], s101 offset:{4*j}']
    return r
OUT = [a for a in sys.argv[1:] if a.endswith('.s')]
OUT = OUT[0] if OUT else 'out.s'
NAME = 'recurrent_scan__compressed_kv_cla__dense_activation_gelu__prompt_kernel'

def f2u(x): return '0x%08x' % struct.unpack('<I', struct.pack('<f', x))[0]
LOG2E = math.log2(math.e)
CSC = LOG2E / math.sqrt(128.0)

XN_OFF = 0
KV_OFF = 2 << 20
AF_OFF = 34 << 20
AF_TILE = 171 * 8192
PART_OFF = 58 << 20
OOB = 0x40000000
FL_OFF = 76 << 20
F_XN, F_KV, F_H, F_CTX, F_P3 = [FL_OFF + 256 * n for n in (0, 16, 48, 56, 72)]

sW, sH, sI = 's4', 's5', 's6'
pX, pCKV, pWQ, pWUK, pWUV, pWO, pW1, pB1, pW2, pB2, pOUT, pDBG, pWS = 16, 18, 20, 22, 24, 26, 30, 32, 34, 36, 38, 40, 42
SA, SB, SWS, SDBG, SC = 's[44:47]', 's[48:51]', 's[52:55]', 's[56:59]', 's[60:63]'
def srd(base, ptr, size):
    return [f's_mov_b32 s{base}, s{ptr}', f's_mov_b32 s{base+1}, s{ptr+1}', f's_mov_b32 s{base+2}, {size}', f's_mov_b32 s{base+3}, 0x00020000']
vLANE, vL16 = 'v1', 'v2'
MF = 'v_mfma_f32_16x16x32_bf16'

P = Prog()
TR = []
def blk(name, ins):
    ins = P.add(name, ins)
    return (name, ins)

def signal(dw_sreg_or_imm, val_text, lab):
    return []

def p0():
    c = []
    c += ['s_cmp_ge_u32 s2, 256', 's_cbranch_scc1 L_end']
    c += ['s_load_dwordx16 s[16:31], s[0:1], 0', 's_load_dwordx8 s[32:39], s[0:1], 64', 's_load_dwordx4 s[40:43], s[0:1], 96']
    c += ['v_and_b32 v1, 63, v0', 'v_lshrrev_b32 v3, 6, v0', 'v_lshlrev_b32 v2, 4, v1', 'v_readfirstlane_b32 s4, v3']
    c += ['s_and_b32 s8, s2, 7', 's_lshr_b32 s9, s2, 3', 's_and_b32 s10, s9, 3', 's_lshl_b32 s5, s8, 2', 's_add_u32 s5, s5, s10', 's_lshr_b32 s6, s9, 2']
    c += ['v_lshrrev_b32 v28, 4, v1', 'v_and_b32 v29, 15, v1', 'v_lshrrev_b32 v30, 3, v1', 'v_and_b32 v31, 7, v1']
    c += ['s_lshl_b32 s8, s6, 8', 's_lshl_b32 s9, s4, 6', 's_add_u32 s8, s8, s9', 's_lshl_b32 s8, s8, 10']
    c += ['v_lshlrev_b32 v32, 10, v30', 'v_add_u32 v32, s8, v32', 'v_xor_b32 v33, v31, v28', 'v_lshlrev_b32 v33, 4, v33', 'v_xor_b32 v34, 64, v33']
    for j in range(8):
        c += [f'v_add_u32 v{4+j}, v32, v{33 + (j & 1)}']
        k = 8 * j * 1024 - (j & 3) * 1024
        if k: c += [f'v_add_u32 v{4+j}, {k}, v{4+j}']
    c += ['s_lshr_b32 s9, s4, 1', 's_lshl_b32 s9, s9, 17', 's_lshl_b32 s10, s5, 8', 's_add_u32 s9, s9, s10']
    c += ['v_lshlrev_b32 v32, 13, v28', 'v_add_u32 v32, s9, v32', 'v_lshlrev_b32 v33, 1, v28', 'v_xor_b32 v33, v33, v29', 'v_lshlrev_b32 v33, 4, v33', 'v_xor_b32 v34, 128, v33']
    for j in range(4):
        c += [f'v_add_u32 v{12+j}, v32, v{33 + (j >> 1)}']
        k = 4 * j * 8192 - j * 1024
        if k: c += [f'v_add_u32 v{12+j}, {k}, v{12+j}']
    c += ['s_waitcnt lgkmcnt(0)']
    c += srd(44, pCKV, 0x200000)
    c += ['s_and_b32 s7, s4, 1', 's_cmp_eq_u32 s7, 0', f's_cselect_b32 s48, s{pWUK}, s{pWUV}', f's_cselect_b32 s49, s{pWUK+1}, s{pWUV+1}', 's_mov_b32 s50, 0x400000', 's_mov_b32 s51, 0x00020000']
    c += srd(52, pWS, 0x10000000) + srd(56, pDBG, 256) + srd(60, pX, 0x200000)
    c += ['s_lshl_b32 s101, s2, 2', 's_add_u32 s101, s101, s4', 's_lshl_b32 s101, s101, 7', f's_add_u32 s101, s101, {96 << 20}'] + stamp(0) if TS else []
    c += ['s_cmp_eq_u32 s2, 0', 's_cbranch_scc1 L_zero', 'L_zero_ret:']
    c += ['s_lshl_b32 s8, s2, 3', 's_lshl_b32 s9, s4, 1', 's_add_u32 s8, s8, s9', 's_lshl_b32 s9, s8, 10']
    c += [f'buffer_load_dwordx4 v[40:43], v2, {SC}, s9 offen', f'buffer_load_dwordx4 v[44:47], v2, {SC}, s9 offen offset:1024']
    c += ['s_lshl_b32 s64, s7, 13', 's_lshr_b32 s10, s4, 1', 's_lshl_b32 s10, s10, 12', 's_add_u32 s64, s64, s10', 's_lshl_b32 s65, s4, 13']
    def wdma(k):
        r = [f's_add_u32 m0, s64, {(k & 3) * 16384}', f's_mov_b32 s66, {k << 18}']
        for j in range(4):
            r.append(I(f'buffer_load_dwordx4 v{12+j}, {SB}, s66 offen offset:{j*1024} lds', tok=f'W{k}', ldsw=(((k & 3) * 16384, (k & 3) * 16384 + 16384), f'W{k}')))
        return r
    def cdma(u, half):
        base = 65536 + (u % 3) * 32768
        r = [f's_add_u32 m0, s65, {base + half * 4096}', f's_mov_b32 s67, {u * 128}']
        for j in range(4):
            r.append(I(f'buffer_load_dwordx4 v{4+half*4+j}, {SA}, s67 offen offset:{j*1024} lds', tok=f'C{u}', ldsw=((base, base + 32768), f'C{u}')))
        return r
    c += wdma(0) + cdma(0, 0) + cdma(0, 1) + wdma(1) + cdma(1, 0) + cdma(1, 1) + wdma(2) + wdma(3) + cdma(2, 0)
    c += ['s_lshr_b32 s10, s4, 1', 's_lshl_b32 s10, s10, 14', 'v_lshlrev_b32 v32, 7, v29', 'v_add_u32 v32, s10, v32',
          'v_lshrrev_b32 v33, 1, v29', 'v_xor_b32 v33, v33, v28', 'v_lshlrev_b32 v33, 4, v33', 'v_add_u32 v16, v32, v33', 'v_xor_b32 v17, 64, v16',
          'v_add_u32 v18, 65536, v16', 'v_add_u32 v19, 65536, v17']
    c += ['v_bfe_u32 v32, v1, 2, 2', 'v_and_b32 v33, 3, v1', 'v_lshl_add_u32 v34, v28, 3, v32', 'v_lshlrev_b32 v34, 8, v34', 'v_lshl_add_u32 v34, v33, 3, v34',
          's_lshl_b32 s10, s7, 13', 'v_add_u32 v34, s10, v34', 'v_and_b32 v35, 1, v28', 'v_lshl_or_b32 v35, v35, 2, v32']
    for db in range(8):
        c += [f'v_xor_b32 v36, {db}, v35', f'v_lshl_add_u32 v{20+db}, v36, 5, v34']
    for r in range(88, 256): c += [f'v_mov_b32 v{r}, 0']
    for r in range(192, 232): c += [f'v_accvgpr_write_b32 a{r}, 0']
    c += [Wt(vm=rs('v', 40, 8))]
    for row in range(2):
        for q in range(4):
            s = 40 + 4 * row + q; d = 48 + 8 * row + 2 * q
            c += [f'v_lshlrev_b32 v{d}, 16, v{s}', f'v_and_b32 v{d+1}, 0xffff0000, v{s}']
    def tree(dst, src):
        r = []
        for row in range(2):
            b = src + 8 * row
            r += [f'v_add_f32 v{dst+row}, v{b}, v{b+1}']
        for k in range(2, 8):
            for row in range(2):
                r += [f'v_add_f32 v{dst+row}, v{dst+row}, v{src + 8*row + k}']
        return r
    def allred(a):
        r = []
        for m in ('quad_perm:[1,0,3,2]', 'quad_perm:[2,3,0,1]', 'row_half_mirror', 'row_mirror'):
            r += ['s_nop 0']
            for row in range(2):
                r += [f'v_add_f32_dpp v{a+row}, v{a+row}, v{a+row} {m} row_mask:0xf bank_mask:0xf']
        for pl in ('v_permlane16_swap_b32', 'v_permlane32_swap_b32'):
            for row in range(2): r += [f'v_mov_b32 v{a+2+row}, v{a+row}']
            r += ['s_nop 0']
            for row in range(2): r += [f'{pl} v{a+2+row}, v{a+row}']
            for row in range(2): r += [f'v_add_f32 v{a+row}, v{a+row}, v{a+2+row}']
        return r
    c += tree(64, 48) + allred(64)
    c += [f'v_mul_f32 v64, {f2u(1/512)}, v64', f'v_mul_f32 v65, {f2u(1/512)}, v65']
    for row in range(2):
        for k in range(8):
            c += [f'v_sub_f32 v{72+8*row+k}, v{48+8*row+k}, v{64+row}']
    for row in range(2):
        for k in range(8):
            c += [f'v_mul_f32 v{72+8*row+k}, v{72+8*row+k}, v{72+8*row+k}']
    c += tree(68, 72) + allred(68)
    c += [f'v_mul_f32 v68, {f2u(1/512)}, v68', f'v_mul_f32 v69, {f2u(1/512)}, v69']
    c += ['v_cvt_pk_bf16_f32 v70, v64, v65', 'v_cvt_pk_bf16_f32 v71, v68, v69',
          'v_lshlrev_b32 v64, 16, v70', 'v_and_b32 v65, 0xffff0000, v70', 'v_lshlrev_b32 v68, 16, v71', 'v_and_b32 v69, 0xffff0000, v71',
          f'v_add_f32 v68, {f2u(1e-5)}, v68', f'v_add_f32 v69, {f2u(1e-5)}, v69', 'v_cvt_pk_bf16_f32 v71, v68, v69',
          'v_lshlrev_b32 v68, 16, v71', 'v_and_b32 v69, 0xffff0000, v71', 'v_sqrt_f32 v68, v68', 'v_sqrt_f32 v69, v69', 's_nop 0',
          'v_cvt_pk_bf16_f32 v71, v68, v69', 'v_lshlrev_b32 v68, 16, v71', 'v_and_b32 v69, 0xffff0000, v71', 'v_rcp_f32 v68, v68', 'v_rcp_f32 v69, v69', 's_nop 0',
          f'v_mul_f32 v68, {f2u(CSC)}, v68', f'v_mul_f32 v69, {f2u(CSC)}, v69']
    for row in range(2):
        b = 48 + 8 * row
        for k in range(8): c += [f'v_sub_f32 v{b+k}, v{b+k}, v{64+row}']
        for q in range(4): c += [f'v_cvt_pk_bf16_f32 v{72+q}, v{b+2*q}, v{b+2*q+1}']
        for q in range(4): c += [f'v_lshlrev_b32 v{b+2*q}, 16, v{72+q}', f'v_and_b32 v{b+2*q+1}, 0xffff0000, v{72+q}']
        for k in range(8): c += [f'v_mul_f32 v{b+k}, v{b+k}, v{68+row}']
        for q in range(4): c += [f'v_cvt_pk_bf16_f32 v{40+4*row+q}, v{b+2*q}, v{b+2*q+1}']
    c += ['s_lshr_b32 s9, s8, 6', 's_lshl_b32 s9, s9, 16', 's_bfe_u32 s10, s8, 0x20004', 's_lshl_b32 s10, s10, 10', 's_add_u32 s9, s9, s10',
          's_and_b32 s10, s8, 15', 's_lshl_b32 s10, s10, 4', 's_add_u32 s9, s9, s10',
          'v_lshrrev_b32 v32, 2, v1', 'v_lshlrev_b32 v32, 12, v32', 'v_and_b32 v33, 3, v1', 'v_lshl_add_u32 v32, v33, 8, v32']
    c += [I(f'buffer_store_dwordx4 v[40:43], v32, {SWS}, s9 offen sc1', tok='LN'), I(f'buffer_store_dwordx4 v[44:47], v32, {SWS}, s9 offen offset:16 sc1', tok='LN')]
    c += ['s_nop 1']
    for r in range(40, 88): c += [f'v_mov_b32 v{r}, 0']
    c += ['s_mov_b32 s66, %d' % (4 << 18), 's_mov_b32 s67, 256', 's_mov_b32 s68, %d' % (65536 + 2 * 32768), 's_mov_b32 s69, 65536', 's_mov_b32 s70, 0']
    c += ['v_and_b32 v35, 3, v1', 'v_lshlrev_b32 v35, 2, v35']
    c += stamp(1)
    c += [Wt(vm={('L', 'W0'), ('L', 'C0')}), 's_barrier'] + stamp(2)
    c += ['s_cmp_eq_u32 s7, 1', 's_cbranch_scc1 L_p1_1']
    return c

def accreg(pos, half):
    if half == 0: return ('v', 128 + 4 * pos)
    return ('v', 40 + 4 * pos) if pos < 22 else ('a', 192 + 4 * (pos - 22))
def p1_reads(k, wc):
    s = k & 1; u = k >> 1; e = k & 1
    cb = 65536 + (u % 3) * 32768; wb = (k & 3) * 16384
    T = []; D = []
    for n in range(8):
        for e2 in range(2):
            T.append(I(f'ds_read_b64_tr_b16 a[{96+64*s+4*n+2*e2}:{96+64*s+4*n+2*e2+1}], v{20+n} offset:{wb + e2*1024}', ldsr=((wb, wb + 16384), f'W{k}')))
        D.append(I(f'ds_read_b128 a[{64+64*s+4*n}:{64+64*s+4*n+3}], v{18+e} offset:{n*2048}', ldsr=((cb, cb + 32768), f'C{u}')))
    return T, D
def p1_pre(wc):
    T, D = p1_reads(0, wc)
    return [f'L_p1_{wc}:'] + T + D + [Wt(lg={'ALL'})]
P2SLOT = [98304 + ((k + 3) % 5) * 11264 for k in range(16)]
def p2a_dma(k):
    b = P2SLOT[k]
    r = [[f's_add_u32 m0, s71, {b}', f's_mov_b32 s72, {k << 18}',
          I(f'buffer_load_dwordx4 v28, {SA}, s72 offen lds', tok=f'X{k}', ldsw=((b, b + 11264), f'X{k}'))],
         [I(f'buffer_load_dwordx4 v29, {SA}, s72 offen offset:1024 lds', tok=f'X{k}', ldsw=((b, b + 11264), f'X{k}'))],
         [f's_add_u32 m0, s73, {b + 8192}', f's_mov_b32 s72, {k * 32 * 2752}',
          I(f'buffer_load_dwordx4 v30, {SC}, s72 offen lds', tok=f'X{k}', ldsw=((b, b + 11264), f'X{k}'))]]
    return r
def p2a_xn(k):
    r = []
    for qb in range(4):
        pre = [f's_add_u32 s75, s74, {k * 4096}'] if qb == 0 else []
        a = 16 * (k & 3) + 4 * qb
        r.append(pre + [I(f'buffer_load_dwordx4 a[{a}:{a+3}], v2, {SWS}, s75 offen offset:{qb*1024} sc1')])
    return r

def p1_kstep(k, wc, peeled):
    s = k & 1; q = k & 3
    mf = []
    for i in range(8):
        for j in range(8):
            pos = (i >> 1) * 8 + j if wc == 1 else 4 * j + (i >> 1)
            kk, r = accreg(pos, i & 1)
            cf = lambda n: f'a[{64+64*s+4*n}:{64+64*s+4*n+3}]'
            wf = lambda n: f'a[{96+64*s+4*n}:{96+64*s+4*n+3}]'
            A, B = (cf(i), wf(j)) if wc == 1 else (wf(i), cf(j))
            mf.append(f'{MF} {vr(kk, r, 4)}, {A}, {B}, {vr(kk, r, 4)}')
    fill = {g: [] for g in range(64)}
    need = set()
    if k < 15: need = {('L', f'W{k+1}'), ('L', f'C{(k+1)>>1}')}
    if k == 3: need |= {('L', 'LN'), ('v', 3)}
    if q == 1 and not peeled: fill[1].append(poll_issue('v35', '0', SDBG))
    if k == 14: need.add(('L', 'C8'))
    fill[0] += [Wt(vm=need), 's_barrier']
    gl = [8 * n + 4 for n in range(8)]
    free = [g for g in range(2, 63) if g not in gl]
    if k < 15:
        T, D = p1_reads(k + 1, wc)
        seq = []
        for n in range(8): seq += [T[2*n], T[2*n+1], D[n]]
        for g, x in zip(free, seq): fill[g].append(x)
        fill[62].append(Wt(lg={'ALL'}))
    if not peeled:
        wb = q * 16384
        fill[gl[0] - 1] += [f's_add_u32 m0, s64, {wb}']
        for j in range(4):
            fill[gl[j]].append(I(f'buffer_load_dwordx4 v{12+j}, {SB}, s66 offen offset:{j*1024} lds', tok=f'W{k+4}', ldsw=((wb, wb + 16384), f'W{k+4}')))
        fill[gl[3] + 1] += [f's_add_u32 s66, s66, {1 << 18}']
        half = 0 if (k & 1) else 1
        u = (k - 1) // 2 + 3 if (k & 1) else k // 2 + 2
        cb = 65536 + (u % 3) * 32768
        if k & 1:
            fill[gl[3] + 2] += ['s_add_u32 s68, s68, 32768', 's_cmp_eq_u32 s68, 163840']
            fill[gl[3] + 3] += ['s_cselect_b32 s68, 65536, s68', 's_add_u32 s67, s67, 128']
            fill[gl[3] + 4] += ['s_cmp_eq_u32 s67, 1024', f's_cselect_b32 s67, {OOB}, s67']
        fill[gl[4] - 2] += ['s_add_u32 s3, s68, s65']
        fill[gl[4] - 1] += [f's_add_u32 m0, s3, {half * 4096}']
        for j in range(4):
            fill[gl[4 + j]].append(I(f'buffer_load_dwordx4 v{4+half*4+j}, {SA}, s67 offen offset:{j*1024} lds', tok=f'C{u}', ldsw=((cb, cb + 32768), f'C{u}')))
    if (k & 1) == 0 and k < 14:
        fill[5] += ['s_add_u32 s69, s69, 32768', 's_cmp_eq_u32 s69, 163840', 's_cselect_b32 s69, 65536, s69']
        fill[30] += ['v_add_u32 v18, s69, v16', 'v_add_u32 v19, s69, v17']
    if peeled:
        if k == 12:
            x = []
            x += srd(44, pWQ, 0x400000) + srd(60, pW1, 512 * 2752)
            x += ['s_lshl_b32 s71, s4, 11', 's_min_u32 s73, s4, 2', 's_lshl_b32 s73, s73, 10']
            x += ['s_sub_u32 s3, 15, s6', 's_cmp_eq_u32 s7, 0', 's_cselect_b32 s3, s3, s6', 's_lshl_b32 s3, s3, 1', 's_lshr_b32 s8, s4, 1', 's_add_u32 s3, s3, s8', 's_lshl_b32 s74, s3, 16']
            x += ['s_lshl_b32 s8, s4, 16', 's_lshl_b32 s9, s5, 8', 's_add_u32 s8, s8, s9', 's_lshl_b32 s9, s7, 2', 's_mul_i32 s10, s5, 96']
            for n, t in enumerate(x): fill[33 + n // 2].append(t)
            y = ['v_lshrrev_b32 v32, 4, v1', 'v_and_b32 v33, 15, v1', 'v_or_b32 v34, s9, v32', 'v_lshlrev_b32 v34, 1, v34', 'v_xor_b32 v34, v34, v33',
                 'v_lshlrev_b32 v34, 4, v34', 'v_lshl_add_u32 v34, v32, 13, v34', 'v_add_u32 v28, s8, v34', f'v_add_u32 v29, {4*8192-1024}, v28']
            y += ['v_lshrrev_b32 v35, 4, s73', 'v_add_u32 v35, v35, v1', 'v_mul_u32_u24 v36, 10923, v35', 'v_lshrrev_b32 v36, 16, v36',
                  'v_mul_u32_u24 v37, 6, v36', 'v_sub_u32 v37, v35, v37', 'v_and_b32 v38, 19, v36', 'v_and_b32 v39, 4, v36', 'v_lshl_or_b32 v38, v39, 1, v38',
                  'v_and_b32 v39, 8, v36', 'v_lshrrev_b32 v39, 1, v39', 'v_or_b32 v38, v38, v39', 'v_mul_u32_u24 v38, 2752, v38', 'v_lshl_add_u32 v38, v37, 4, v38', 'v_add_u32 v30, s10, v38']
            y += ['v_and_b32 v35, 32, v1', 'v_lshrrev_b32 v35, 1, v35', 'v_bfe_u32 v36, v1, 2, 3', 'v_or_b32 v35, v35, v36', 'v_mul_u32_u24 v35, 96, v35',
                  'v_and_b32 v36, 3, v1', 'v_lshl_add_u32 v35, v36, 3, v35', f'v_add_u32 v31, {98304+8192}, v35']
            for n, t in enumerate(y): fill[46 + n // 2].append(t)
        if k == 13:
            fill[30] += ['s_lshr_b32 s78, s74, 17', 's_lshl_b32 s78, s78, 8', f's_add_u32 s78, s78, {F_XN}', 'v_and_b32 v35, 15, v1', 'v_lshlrev_b32 v35, 2, v35']
            fill[32] += [poll_issue('v35', 's78')]
        if k == 14:
            fill[28] += poll_check(f'L_pollxn_{wc}')
        if k in (14, 15):
            items = []
            for kk in ((0, 1) if k == 14 else (2, 3, 4)): items += p2a_dma(kk)
            for kk in ((0, 1) if k == 14 else (2,)): items += p2a_xn(kk)
            gs = [g for g in range(30 if k == 14 else 2, 62, 2)]
            for g, it in zip(gs, items):
                for x in it:
                    x = I(x) if isinstance(x, str) else x
                    (fill[g - 1] if x.kind == 'salu' else fill[g]).append(x)
    return gaps(mf, fill)

def p1_backedge(wc):
    return ['s_add_u32 s70, s70, 1', 's_lshl_b32 s3, s4, 2', 's_add_u32 s3, s3, s70', 's_cmp_eq_u32 s3, 1', f's_cbranch_scc1 L_sigxn_{wc}', f'L_sigxn_ret_{wc}:',
            's_cmp_lt_u32 s70, 3', f's_cbranch_scc1 L_p1loop_{wc}']

def sig_stub(lab, ret, pre, offs):
    return [f'{lab}:'] + pre + ['s_mov_b64 s[98:99], exec', 's_mov_b64 exec, 1', 'v_mov_b32 v3, 1'] + \
           [f'buffer_store_dword v3, off, {SWS}, {o} sc1' for o in offs] + ['s_mov_b64 exec, s[98:99]', f's_branch {ret}']
def poll_issue(vo, offs, srd_=None): return f'buffer_load_dword v3, {vo}, {srd_ or SWS}, {offs} offen sc1'
def poll_check(lab):
    return [Wt(vm={('v', 3)}), I('v_cmp_ne_u32 vcc, 0, v3', keep=True), 's_cmp_eq_u64 vcc, -1', f's_cbranch_scc0 {lab}', f'{lab}_ret:']
def poll_stub(lab, vo, offs, srd_=None):
    return [f'{lab}:', 's_mov_b32 s100, 0x40000', f'{lab}_l:', poll_issue(vo, offs, srd_), 's_waitcnt vmcnt(0)',
            'v_cmp_ne_u32 vcc, 0, v3', 's_cmp_eq_u64 vcc, -1', f's_cbranch_scc1 {lab}_ret',
            's_sub_u32 s100, s100, 1', 's_cmp_lg_u32 s100, 0', f's_cbranch_scc1 {lab}_l', f's_branch {lab}_ret']

def p2a_reads(k):
    s = k & 1; b = P2SLOT[k]; o = b - 98304
    T = []
    for n in range(11):
        for e2 in range(2):
            d = 64 + 44 * s + 4 * n + 2 * e2
            if n < 8: t = f'ds_read_b64_tr_b16 a[{d}:{d+1}], v{20+n} offset:{o + e2*1024}'
            else: t = f'ds_read_b64_tr_b16 a[{d}:{d+1}], v31 offset:{o + e2*768 + (n-8)*32}'
            T.append(I(t, ldsr=((b, b + 11264), f'X{k}')))
    return T
def trans12():
    c = ['L_p1_done:'] + stamp(3)
    c += ['s_lshl_b32 s3, s7, 13', 's_sub_u32 s3, 98304, s3']
    for n in range(8): c += [f'v_add_u32 v{20+n}, s3, v{20+n}']
    c += [Wt(vm={('L', 'X0')}), 's_barrier']
    c += p2a_reads(0)
    c += ['s_lshl_b32 s76, s5, 20', 's_lshl_b32 s3, s6, 17', 's_add_u32 s76, s76, s3', 's_lshr_b32 s3, s4, 1', 's_lshl_b32 s3, s3, 16', 's_add_u32 s76, s76, s3',
          's_lshl_b32 s3, s7, 13', 's_add_u32 s76, s76, s3', f's_add_u32 s76, s76, {KV_OFF}']
    for pos in range(32):
        e = 128 + 4 * pos
        kk, o = accreg(pos, 1)
        if kk == 'a':
            for r in range(4): c += [f'v_accvgpr_read_b32 v{32+r}, a{o+r}']
            o = 32
        c += [f'v_cvt_pk_bf16_f32 v{e}, v{e}, v{e+1}', f'v_cvt_pk_bf16_f32 v{e+1}, v{e+2}, v{e+3}',
              f'v_cvt_pk_bf16_f32 v{e+2}, v{o}, v{o+1}', f'v_cvt_pk_bf16_f32 v{e+3}, v{o+2}, v{o+3}']
    c += [Wt(lg={'ALL'}, vm=rs('a', 0, 16))] + stamp(4)
    return c

def qacc(db, qb):
    qi = db * 4 + qb
    return ('v', 88 + 4 * qi) if qi < 10 else ('a', 152 + 4 * (qi - 10))
def facc(fb, qb): return ('v', 40 + 4 * (fb * 4 + qb))
def p2a_kstep(k):
    s = k & 1
    mf = []
    for n in range(11):
        for qb in range(4):
            kk, r = qacc(n, qb) if n < 8 else facc(n - 8, qb)
            x = 16 * (k & 3) + 4 * qb
            C = '0' if k == 0 else vr(kk, r, 4)
            mf.append(f'{MF} {vr(kk, r, 4)}, a[{64+44*s+4*n}:{64+44*s+4*n+3}], a[{x}:{x+3}], {C}')
    fill = {g: [] for g in range(44)}
    need = set()
    if k < 15: need.add(('L', f'X{k+1}'))
    if k == 13: need.add(('L', 'KV'))
    fill[0] += [Wt(vm=need), 's_barrier']
    items = []
    if k + 5 <= 15: items += p2a_dma(k + 5)
    if k + 3 <= 15: items += p2a_xn(k + 3)
    for n in range(3 * k, min(3 * k + 3, 32)):
        pre = [f's_add_u32 s77, s76, {(n >> 3) * 16384 + ((n >> 2) & 1) * 4096}'] if (n % 4 == 0 or n % 3 == 0) else []
        items.append(pre + [I(f'buffer_store_dwordx4 v[{128+4*n}:{131+4*n}], v2, {SWS}, s77 offen offset:{(n&3)*1024} sc1', tok='KV')])
    if k == 13:
        fill[1] += [I('s_cmp_eq_u32 s4, 0', keep=True), 's_cbranch_scc1 L_sigkv', 'L_sigkv_ret:']
        items.append(srd(48, pB1, 2752)[:2] + ['v_lshrrev_b32 v38, 4, v1'])
        items.append(srd(48, pB1, 2752)[2:] + ['v_lshlrev_b32 v38, 3, v38'])
        items.append(['s_mul_i32 s3, s5, 96'])
        for fb in range(3): items.append([f'buffer_load_dwordx2 v[{32+2*fb}:{33+2*fb}], v38, {SB}, s3 offen offset:{fb*32}'])
    if k == 15:
        fill[30] += ['s_lshl_b32 s78, s5, 8', f's_add_u32 s78, s78, {F_KV}', 'v_and_b32 v39, 7, v1', 'v_lshlrev_b32 v39, 2, v39']
        fill[40] += [poll_issue('v39', 's78')]
    T = p2a_reads(k + 1) if k < 15 else []
    g = 2; ti = 0; ii = 0
    while ti < len(T) or ii < len(items):
        for _ in range(2):
            if ti < len(T): fill[g].append(T[ti]); ti += 1; g += 1
        if ii < len(items):
            for x in items[ii]:
                x = I(x) if isinstance(x, str) else x
                (fill[g - 1] if x.kind == 'salu' else fill[g]).append(x)
            ii += 1; g += 1
    if k < 15: fill[42].append(Wt(lg={'ALL'}, vm=rs('a', 16 * ((k + 1) & 3), 16)))
    return gaps(mf, fill)

def Sreg(b, kb, qb): return 64 + 32 * b + (qb * 2 + kb) * 4
def Preg(b, qb): return 128 + 16 * b + 4 * qb
def NM(qb): return 160 + 4 * qb
def FR(g): return 176 + 4 * (g & 7)
TMP = 208
def Lr(b, qb): return 224 + 4 * b + qb
vCUR, vNXT, vDEL, vNEG = 'v232', 'v233', 'v234', 'v235'
def Oreg(db, qb): return (db * 4 + qb) * 4
def Qreg(ds, qb): return 128 + (ds * 4 + qb) * 4
def kslot(x): return ((x >> 1) & 1) * 65536 + (x & 1) * 16384
def kv_dma(kind, x, gidx):
    pass

def p2a_epi():
    c = ['s_nop 7'] + stamp(5)
    for ds in range(4):
        for qb in range(4):
            d = 128 + (ds * 4 + qb) * 4
            for hf in range(2):
                kk, r = qacc(2 * ds + hf, qb)
                if kk == 'a':
                    t = 192 + 4 * ((ds * 8 + qb * 2 + hf) & 3)
                    for j in range(4): c += [f'v_accvgpr_read_b32 v{t+j}, a{r+j}']
                    r = t
                c += [f'v_cvt_pk_bf16_f32 v{d+2*hf}, v{r}, v{r+1}', f'v_cvt_pk_bf16_f32 v{d+2*hf+1}, v{r+2}, v{r+3}']
    c += poll_check('L_pollkv') + stamp(23)
    c += ['s_lshr_b32 s8, s4, 1', 's_lshl_b32 s9, s8, 12', 's_lshl_b32 s10, s7, 13', 's_add_u32 s80, s9, s10', 's_add_u32 s81, s80, 65536',
          's_lshl_b32 s84, s5, 20', 's_lshl_b32 s10, s7, 15', 's_add_u32 s84, s84, s10', 's_add_u32 s84, s84, s9', f's_add_u32 s84, s84, {KV_OFF}',
          's_add_u32 s88, s84, 8192']
    for kind, x in (('K', 0), ('K', 1), ('V', 0), ('K', 2), ('K', 3), ('V', 1)):
        lb = kslot(x) + (32768 if kind == 'V' else 0)
        go = (x >> 1) * 65536 + (x & 1) * 16384
        c += [f's_add_u32 m0, s80, {lb}', f's_add_u32 s3, s{84 if kind == "K" else 88}, {go}']
        for j in range(4):
            c.append(I(f'buffer_load_dwordx4 v2, {SWS}, s3 offen offset:{j*1024} sc1 lds', tok=f'{kind}{x}', ldsw=((lb, lb + 16384), f'{kind}{x}')))
    c += ['s_add_u32 s82, s84, 131072', 's_sub_u32 s83, 14, s6', 's_add_u32 s85, s6, 1', 's_add_u32 s86, s88, 65536', 's_sub_u32 s87, 15, s6', 's_add_u32 s89, s6, 1']
    c += ['s_lshl_b32 s3, s4, 14', 's_add_u32 s3, s3, 98304', 'v_add_u32 v39, s3, v2', 's_barrier']
    for f in range(16):
        c.append(I(f'ds_write_b128 v39, v[{128+4*f}:{131+4*f}] offset:{f*1024}', ldsw=((98304, 163840), 'QX')))
    c += ['s_lshl_b32 s3, s8, 15', 's_add_u32 s3, s3, 98304', 'v_add_u32 v39, s3, v2', Wt(lg={'ALL'}), 's_barrier']
    for f in range(32):
        c.append(I(f'ds_read_b128 a[{128+4*f}:{131+4*f}], v39 offset:{f*1024}', ldsr=((98304, 163840), 'QX')))
    c += stamp(24)
    K0 = -2.0 * LOG2E * math.sqrt(2.0 / math.pi); K1 = K0 * 0.044715
    c += [f's_mov_b32 s8, {f2u(1.0 / CSC)}', f's_mov_b32 s9, {f2u(K1)}', f'v_mov_b32 v38, {f2u(K0)}', Wt(vm=rs('v', 32, 6))]
    for fb in range(3):
        for j in range(2):
            c += [f'v_lshlrev_b32 v{192+4*fb+2*j}, 16, v{32+2*fb+j}', f'v_and_b32 v{193+4*fb+2*j}, 0xffff0000, v{32+2*fb+j}']
    for fb in range(3):
        for qb in range(0, 4, 2):
            R = [facc(fb, qb + (n >> 2))[1] + (n & 3) for n in range(8)]
            Tm = [208 + n for n in range(8)]
            st = [lambda x, t, n: f'v_fma_f32 v{x}, v{x}, s8, v{192+4*fb+(n&3)}', lambda x, t, n: f'v_mul_f32 v{t}, v{x}, v{x}',
                  lambda x, t, n: f'v_fma_f32 v{t}, v{t}, s9, v38', lambda x, t, n: f'v_mul_f32 v{t}, v{t}, v{x}', lambda x, t, n: f'v_exp_f32 v{t}, v{t}',
                  lambda x, t, n: f'v_add_f32 v{t}, 1.0, v{t}', lambda x, t, n: f'v_rcp_f32 v{t}, v{t}', lambda x, t, n: f'v_mul_f32 v{x}, v{x}, v{t}']
            for f in st:
                for n in range(8): c.append(f(R[n], Tm[n], n))
            for q in range(2):
                r = facc(fb, qb + q)[1]
                c += [f'v_cvt_pk_bf16_f32 v{r}, v{r}, v{r+1}', f'v_cvt_pk_bf16_f32 v{r+1}, v{r+2}, v{r+3}']
    c += stamp(25)
    c += ['s_lshr_b32 s3, s74, 17', f's_mul_i32 s8, s3, {AF_TILE}', 's_lshr_b32 s3, s4, 1', 's_lshl_b32 s3, s3, 12', 's_add_u32 s8, s8, s3', f's_add_u32 s8, s8, {AF_OFF + 128*8192}',
          's_mul_i32 s9, s5, 3']
    for fb in range(3):
        c += [f's_add_u32 s10, s9, {fb}', 's_lshr_b32 s3, s10, 1', 's_lshl_b32 s3, s3, 13', 's_add_u32 s3, s3, s8', 's_and_b32 s11, s10, 1', 's_lshl_b32 s11, s11, 3', 's_add_u32 s3, s3, s11',
              's_cmp_lt_u32 s10, 86', f's_cselect_b32 s3, s3, {OOB}']
        for qb in range(4):
            r = facc(fb, qb)[1]
            c.append(I(f'buffer_store_dwordx2 v[{r}:{r+1}], v2, {SWS}, s3 offen offset:{qb*1024} sc1', tok='H'))
    c += ['s_lshl_b32 s3, s7, 13', f'v_add_u32 {vCUR}, s3, v2', f'v_xor_b32 {vNXT}, 0x10000, {vCUR}',
          's_lshr_b32 s3, s4, 1', 's_sub_u32 s3, s7, s3', 's_lshl_b32 s3, s3, 6', 'v_lshrrev_b32 v38, 4, v1', 'v_lshlrev_b32 v38, 2, v38', 'v_and_b32 v39, 15, v1',
          'v_sub_u32 v38, v38, v39', f'v_add_u32 {vDEL}, s3, v38', f'v_mov_b32 {vNEG}, 0xff800000',
          f's_mov_b32 s94, {f2u(2.0**30)}', 's_mov_b32 s91, 0', 's_sub_u32 s92, 15, s6']
    return c

def kread(g, t, kb, ds, g0, p):
    x = g0 + t
    return x
def frag_read(kind, step, idx, g, it, g0):
    m2 = it & ~1
    rel = step - m2
    reg = vCUR if rel in (0, 1) else vNXT
    off = (rel & 1) * 16384 + (32768 if kind == 'V' else 0) + idx * 1024
    x = g0 + step
    lb = kslot(x) + (32768 if kind == 'V' else 0)
    return I(f'ds_read_b128 v[{FR(g)}:{FR(g)+3}], {reg} offset:{off}', ldsr=((lb, lb + 16384), f'{kind}{x}'))
def qk_group(b, kb, ds, g, czero=False):
    r = []
    for qb in range(4):
        D = vr('v', Sreg(b, kb, qb), 4)
        C = D if ds > 0 else ('0' if czero else vr('v', NM(qb), 4))
        r.append(f'{MF} {D}, v[{FR(g)}:{FR(g)+3}], a[{Qreg(ds, qb)}:{Qreg(ds, qb)+3}], {C}')
    return r
def pv_group(b, db, g):
    r = []
    for qb in range(4):
        D = vr('a', Oreg(db, qb), 4)
        r.append(f'{MF} {D}, v[{FR(g)}:{FR(g)+3}], v[{Preg(b, qb)}:{Preg(b, qb)+3}], {D}')
    return r
def softmax_ops(b):
    E = []; A = []; C = []
    for e in range(32):
        qb = e >> 3; s = Sreg(b, 0, qb) + (e & 7); t = TMP + (e & 15)
        E.append(f'v_exp_f32 v{t}, v{s}')
        src = Lr(1 - b, qb) if (e & 7) == 0 else Lr(b, qb)
        A.append(f'v_add_f32 v{Lr(b, qb)}, v{src}, v{t}')
        if e & 1: C.append(f'v_cvt_pk_bf16_f32 v{Preg(b, qb) + ((e & 7) >> 1)}, v{t-1}, v{t}')
    return E, A, C
def check_ops(b, site):
    return [f'v_max3_f32 v236, v{Lr(b,0)}, v{Lr(b,1)}, v{Lr(b,2)}', f'v_max_f32 v236, v236, v{Lr(b,3)}', 'v_cmp_lt_f32 vcc, s94, v236',
            f's_cbranch_vccnz L_rare_{site}', f'L_rare_ret_{site}:']
def stream_adv(base):
    o, n, o2, n2 = base, base + 1, base + 2, base + 3
    return [f's_add_u32 s{o}, s{o}, 65536', f's_sub_u32 s{n}, s{n}, 1', f's_cmp_eq_u32 s{n}, 0', f's_cselect_b32 s{o}, s{o2}, s{o}', f's_cselect_b32 s{n}, s{n2}, s{n}',
            f's_cselect_b32 s{o2}, {OOB}, s{o2}', f's_cselect_b32 s{n2}, -1, s{n2}']

def att_iter(t, g0, qk=True, pv=True, sm=True, nxt_qk=True, nxt_pv=True, site=None, extra_need=(), post_bar=(), dma=True, ntot=99):
    p = t & 1
    groups = []
    for n in range(8):
        if qk: groups.append(('K', n, 2 * n))
        if pv: groups.append(('V', n, 2 * n + 1))
    look = []
    if nxt_qk: look.append(('K', t + 2, 0, 0))
    if nxt_pv: look.append(('V', t, 0, 1))
    if nxt_qk: look.append(('K', t + 2, 1, 2))
    if not nxt_qk and nxt_pv: look += [('V', t, 1, 3)]
    have = 3 if (qk and pv) else 2
    mf = []
    for kind, n, g in groups:
        mf += qk_group(1 - p, n >> 2, n & 3, g) if kind == 'K' else pv_group(1 - p, n, g)
    NG = len(groups); NM_ = len(mf)
    fill = {g: [] for g in range(NM_)}
    need = {('L', f'K{g0+t+2}'), ('L', f'V{g0+t}')} | set(extra_need)
    fill[0] += [Wt(vm=need), 's_barrier'] + list(post_bar)
    reads = [frag_read(k, (t + 1) if k == 'K' else (t - 1), n, g, t, g0) for (k, n, g) in groups[have:]]
    reads += [frag_read(k, st_, n, g, t, g0) for (k, st_, n, g) in look]
    for gi in range(NG):
        if gi < len(reads): fill[4 * gi + 1].append(reads[gi])
        nx = groups[gi + 1][2] if gi + 1 < NG else (look[0][3] if look else None)
        if nx is not None: fill[4 * gi + 3].append(Wt(lg=rs('v', FR(nx), 4)))
    for x in reads[NG:]:
        fill[NM_ - 2].append(x)
    if dma:
        step = NM_ // 8
        gl = [step * n + step - 1 for n in range(8)]
        for half, (kind, x, sb, so) in enumerate((('K', g0 + t + 4, 's80', 's82'), ('V', g0 + t + 2, 's81', 's86'))):
            lo = p * 16384 + (32768 if kind == 'V' else 0)
            lb = kslot(x) + (32768 if kind == 'V' else 0)
            g = gl[4 * half]
            fill[g - 1] += [f's_add_u32 m0, {sb}, {lo}', f's_add_u32 s95, {so}, {p * 16384}']
            for j in range(4):
                fill[gl[4 * half + j]].append(I(f'buffer_load_dwordx4 v2, {SWS}, s95 offen offset:{j*1024} sc1 lds', tok=f'{kind}{x}', ldsw=((lb, lb + 16384), f'{kind}{x}')))
        if p == 1:
            a1 = stream_adv(82); a2 = stream_adv(86)
            g = gl[4] + 1
            for n, x in enumerate(a1): fill[g + n].append(x)
            tail_salu = a2 + ['s_xor_b32 s80, s80, 0x10000', 's_xor_b32 s81, s81, 0x10000']
        else: tail_salu = []
    else: tail_salu = []
    tail = []
    if sm:
        E, A, C = softmax_ops(p)
        if NM_ == 64:
            for e in range(32):
                fill[2 * e].append(E[e]); fill[2 * e + 1].append(A[e])
                if e & 1: fill[2 * e + 1].append(C[e >> 1])
        else:
            for e in range(32):
                fill[e].append(E[e])
                if e > 0:
                    fill[e].append(A[e - 1])
                    if (e - 1) & 1: fill[e].append(C[(e - 1) >> 1])
            tail += ['s_nop 0', A[31], C[15]]
    out = gaps(mf, fill) + [I(x) for x in tail]
    if p == 1: out += [I(f'v_xor_b32 {vCUR}, 0x10000, {vCUR}'), I(f'v_xor_b32 {vNXT}, 0x10000, {vNXT}')]
    out += [I(x) for x in tail_salu]
    if sm: out += [I(x) for x in check_ops(p, site)]
    return out

def mask_ops(b, e):
    c = []
    n = 0
    for qb in range(4):
        for kb in range(2):
            for r in range(4):
                k = 16 * qb - 16 * kb - 32 * e - r
                sp = ['s[8:9]', 's[10:11]', 's[12:13]', 's[14:15]'][n & 3]
                c.append((k, sp, Sreg(b, kb, qb) + r)); n += 1
    out = []
    def cmp(k, sp):
        if -16 <= k <= 64: return [f'v_cmp_lt_i32 {sp}, {k}, {vDEL}']
        return [f's_mov_b32 s3, {k}', f'v_cmp_lt_i32 {sp}, s3, {vDEL}']
    for i in range(len(c) + 3):
        if i < len(c): out += cmp(c[i][0], c[i][1])
        if i == len(c): out += ['s_nop 0']
        if i >= 3: out += [f'v_cndmask_b32 v{c[i-3][2]}, v{c[i-3][2]}, {vNEG}, {c[i-3][1]}']
    return out
def rowmax(b, dst):
    c = []
    for qb in range(4):
        s = Sreg(b, 0, qb)
        c += [f'v_max3_f32 v{dst+qb}, v{s}, v{s+1}, v{s+2}']
    for j in (3, 5):
        for qb in range(4):
            s = Sreg(b, 0, qb); c += [f'v_max3_f32 v{dst+qb}, v{dst+qb}, v{s+j}, v{s+j+1}']
    for qb in range(4):
        s = Sreg(b, 0, qb); c += [f'v_max_f32 v{dst+qb}, v{dst+qb}, v{s+7}']
    c += xlane('v_max_f32', dst)
    return c
def xlane(op, dst):
    c = []
    for pl in ('v_permlane16_swap_b32', 'v_permlane32_swap_b32'):
        for qb in range(4): c += [f'v_mov_b32 v{dst+4+qb}, v{dst+qb}']
        for qb in range(4): c += [f'{pl} v{dst+4+qb}, v{dst+qb}']
        for qb in range(4): c += [f'{op} v{dst+qb}, v{dst+qb}, v{dst+4+qb}']
    return c

def att_pre(g0):
    c = ['L_tile:'] + stamp(6, True) + [Wt(vm={('L', f'K{g0}'), ('L', f'K{g0+1}')}, lg={'ALL'}), 's_barrier']
    rd = [frag_read('K', 0, n, n, 0, g0) for n in range(8)]
    c += rd
    mf = []
    for n in range(8): mf += qk_group(0, n >> 2, n & 3, n, czero=True)
    fill = {g: [] for g in range(32)}
    z = [f'v_accvgpr_write_b32 a{r}, 0' for r in range(128)]
    for g in range(32): fill[g] += z[2 * g:2 * g + 2]
    for n in range(1, 8): fill[4 * n - 1].append(Wt(lg=rs('v', FR(n), 4)))
    fill[17].append(frag_read('K', 1, 0, 0, 0, g0)); fill[21].append(frag_read('K', 1, 1, 2, 0, g0))
    c += [Wt(lg=rs('v', FR(0), 4))] + gaps(mf, fill) + z[64:]
    for qb in range(4): c += [f'v_mov_b32 v{Lr(1, qb)}, 0']
    c += ['s_cmp_eq_u32 s92, 0', 's_cbranch_scc1 L_mask_pre', 'L_mask_pre_ret:']
    c += rowmax(0, TMP)
    for qb in range(4): c += [f'v_max_f32 v{TMP+qb}, {f2u(-3.0e38)}, v{TMP+qb}']
    for qb in range(4):
        for r in range(4): c += [f'v_sub_f32 v{NM(qb)+r}, 0, v{TMP+qb}']
        for j in range(8): c += [f'v_sub_f32 v{Sreg(0,0,qb)+j}, v{Sreg(0,0,qb)+j}, v{TMP+qb}']
    c += ['s_mov_b32 s90, s92', Wt(lg=rs('v', FR(0), 4))] + stamp(7, True)
    return c

def rare(p):
    c = [f'L_rare{p}:', 's_nop 7']
    c += rowmax(p, TMP)
    for qb in range(4): c += [f'v_max_f32 v{TMP+qb}, 0, v{TMP+qb}']
    for qb in range(4): c += [f'v_exp_f32 v{TMP+4+qb}, -v{TMP+qb}']
    for qb in range(4):
        for r in range(4): c += [f'v_sub_f32 v{NM(qb)+r}, v{NM(qb)+r}, v{TMP+qb}']
        for b in range(2):
            for j in range(8): c += [f'v_sub_f32 v{Sreg(b,0,qb)+j}, v{Sreg(b,0,qb)+j}, v{TMP+qb}']
        c += [f'v_mul_f32 v{Lr(1-p, qb)}, v{Lr(1-p, qb)}, v{TMP+4+qb}']
    for db in range(8):
        for qb in range(4):
            o = Oreg(db, qb)
            for r in range(4): c += [f'v_accvgpr_read_b32 v{TMP+8+r}, a{o+r}']
            for r in range(4): c += [f'v_mul_f32 v{TMP+8+r}, v{TMP+8+r}, v{TMP+4+qb}']
            for r in range(4): c += [f'v_accvgpr_write_b32 a{o+r}, v{TMP+8+r}']
    E, A, C = softmax_ops(p)
    for e0 in range(0, 32, 8):
        c += E[e0:e0 + 8] + ['s_nop 0'] + A[e0:e0 + 8] + C[e0 // 2:e0 // 2 + 4]
    c += ['s_nop 1']
    a, b = (('first', 'mid0') if p == 0 else ('mid1', 'last'))
    c += ['s_cmp_eq_u32 s93, 0', f's_cbranch_scc1 L_rare_ret_{a}', f's_branch L_rare_ret_{b}']
    c += [f'L_rare_{a}:', 's_mov_b32 s93, 0', f's_branch L_rare{p}', f'L_rare_{b}:', 's_mov_b32 s93, 1', f's_branch L_rare{p}']
    return c

def att_stats(tile):
    c = stamp(8, True)
    for qb in range(4): c += [f'v_mov_b32 v{TMP+qb}, v{Lr(1, qb)}']
    c += xlane('v_add_f32', TMP)
    for qb in range(4): c += [f'v_mov_b32 v{TMP+4+qb}, v{NM(qb)}']
    c += ['s_lshl_b32 s3, s4, 11', 's_add_u32 s3, s3, 131072', 'v_add_u32 v237, s3, v2', 'v_xor_b32 v238, 2048, v237']
    c += [I(f'ds_write_b128 v237, v[{TMP}:{TMP+3}]', ldsw=((131072, 139264), f'ST{tile}'), tok='ST'), I(f'ds_write_b128 v237, v[{TMP+4}:{TMP+7}] offset:1024', ldsw=((131072, 139264), f'ST{tile}'), tok='ST')]
    c += [Wt(lg={('L', 'ST')})]
    return c
def att_drain(n, g0, tile):
    t = n
    groups = [('V', k, 2 * k + 1) for k in range(8)]
    mf = []
    for kind, k, g in groups: mf += pv_group(1, k, g)
    fill = {g: [] for g in range(32)}
    fill[0] += ['s_barrier']
    reads = [frag_read('V', t - 1, k, g, t, g0) for (_, k, g) in groups[2:]]
    for gi in range(8):
        if gi < len(reads): fill[4 * gi + 1].append(reads[gi])
        if gi + 1 < 8: fill[4 * gi + 3].append(Wt(lg=rs('v', FR(groups[gi + 1][2]), 4)))
    fill[2] += [I('ds_read_b128 v[64:67], v238', ldsr=((131072, 139264), f'ST{tile}'))]
    fill[3] += [I('ds_read_b128 v[68:71], v238 offset:1024', ldsr=((131072, 139264), f'ST{tile}'))]
    fill[8] += [Wt(lg=rs('v', 64, 8))]
    w = []
    for qb in range(4): w += [f'v_min_f32 v{72+qb}, v{TMP+4+qb}, v{68+qb}']
    for qb in range(4): w += [f'v_sub_f32 v{76+qb}, v{72+qb}, v{TMP+4+qb}', f'v_sub_f32 v{80+qb}, v{72+qb}, v{68+qb}']
    for qb in range(4): w += [f'v_exp_f32 v{76+qb}, v{76+qb}', f'v_exp_f32 v{80+qb}, v{80+qb}']
    for qb in range(4): w += [f'v_mul_f32 v{72+qb}, v{76+qb}, v{TMP+qb}']
    for qb in range(4): w += [f'v_fmac_f32 v{72+qb}, v{80+qb}, v{64+qb}']
    for qb in range(4): w += [f'v_rcp_f32 v{72+qb}, v{72+qb}']
    for qb in range(4): w += [f'v_mul_f32 v{TMP+8+qb}, v{76+qb}, v{72+qb}', f'v_mul_f32 v{TMP+12+qb}, v{80+qb}, v{72+qb}']
    for n_, x in enumerate(w): fill[9 + n_ // 2].append(x)
    c = gaps(mf, fill)
    c += [I(x) for x in ['s_and_b32 s3, s81, 0x10000', 's_add_u32 s3, s3, 32768', 's_cmp_lt_u32 s4, 2', 's_cselect_b32 s3, 131072, s3', 's_lshl_b32 s8, s7, 14', 's_add_u32 s3, s3, s8',
          'v_add_u32 v237, s3, v2', 'v_xor_b32 v238, 16384, v237',
          f's_mul_i32 s8, s92, {AF_TILE}', 's_lshl_b32 s9, s5, 15', 's_add_u32 s8, s8, s9', 's_lshl_b32 s9, s7, 14', 's_add_u32 s8, s8, s9',
          's_lshr_b32 s9, s4, 1', 's_lshl_b32 s9, s9, 12', 's_add_u32 s8, s8, s9', f's_add_u32 s8, s8, {AF_OFF}', 's_add_u32 s9, s8, 8192']]
    c += [Wt(lg={'ALL'}), I('s_barrier'), I('s_cmp_eq_u32 s7, 1'), I('s_cbranch_scc1 L_epi_1')]
    return c
def att_epi(cc, n, g0, tile):
    vb = kslot(g0 + n - 2) + 32768
    c = [f'L_epi_{cc}:'] + stamp(9, True)
    for q in range(16):
        o = (1 - cc) * 64 + 4 * q
        c.append(I(f'ds_write_b128 v237, a[{o}:{o+3}] offset:{q*1024}', ldsw=[((131072, 163840), f'OX{tile}'), ((vb, vb + 32768), f'OY{tile}')]))
    for q in range(16):
        for r in range(4): c += [f'v_accvgpr_read_b32 v{128+4*q+r}, a{cc*64+4*q+r}']
    c += [Wt(lg={'ALL'}), 's_barrier']
    for q in range(16):
        c.append(I(f'ds_read_b128 v[{64+4*q}:{67+4*q}], v238 offset:{q*1024}', ldsr=[((131072, 163840), f'OX{tile}'), ((vb, vb + 32768), f'OY{tile}')]))
    for q in range(16):
        for r in range(4): c += [f'v_mul_f32 v{128+4*q+r}, v{128+4*q+r}, v{TMP+8+(q&3)}']
    for dsl in range(2):
        for qb in range(4):
            qa, qb2 = (2 * dsl) * 4 + qb, (2 * dsl + 1) * 4 + qb
            c += [Wt(lg=rs('v', 64 + 4 * qa, 4) | rs('v', 64 + 4 * qb2, 4))]
            for q in (qa, qb2):
                for r in range(4): c += [f'v_fmac_f32 v{128+4*q+r}, v{64+4*q+r}, v{TMP+12+qb}']
            d = 128 + 4 * qa; e = 128 + 4 * qb2
            c += [f'v_cvt_pk_bf16_f32 v{d}, v{d}, v{d+1}', f'v_cvt_pk_bf16_f32 v{d+1}, v{d+2}, v{d+3}', f'v_cvt_pk_bf16_f32 v{d+2}, v{e}, v{e+1}', f'v_cvt_pk_bf16_f32 v{d+3}, v{e+2}, v{e+3}']
            c.append(I(f'buffer_store_dwordx4 v[{d}:{d+3}], v2, {SWS}, s{8+dsl} offen offset:{qb*1024} sc1', tok=f'CTX{tile}'))
    if cc == 0: c += ['s_branch L_epi_done']
    return c
def att_next():
    c = ['L_epi_done:', 's_cmp_eq_u32 s91, 1', 's_cbranch_scc1 L_att_done']
    for r in range(64): c += [f'v_accvgpr_mov_b32 a{128+r}, a{192+r}']
    c += ['s_mov_b32 s91, 1', 's_mov_b32 s96, s92', 's_mov_b32 s92, s6', 's_branch L_tile']
    return c

def p3_dma(pair, kk):
    lb = (pair % 5) * 32768 + kk * 16384
    meta = dict(tok=f'Z{pair}', ldsw=(((pair % 5) * 32768, (pair % 5) * 32768 + 32768), f'Z{pair}'))
    W = [['s_lshl_b32 s75, s68, 15', 's_add_u32 s76, s75, s70', f's_add_u32 m0, s71, {kk*16384}', 's_cmp_lt_u32 s68, s67', f's_cselect_b32 s76, s76, {OOB}',
          I(f'buffer_load_dwordx4 v4, {SA}, s76 offen lds', **meta)],
         [I(f'buffer_load_dwordx4 v5, {SA}, s76 offen offset:1024 lds', **meta)]]
    A = [['s_lshl_b32 s75, s68, 13', 's_add_u32 s76, s75, s69', f's_add_u32 m0, s71, {kk*16384+8192}', 's_cmp_lt_u32 s68, s67', f's_cselect_b32 s76, s76, {OOB}', 's_add_u32 s68, s68, 1',
          I(f'buffer_load_dwordx4 v2, {SWS}, s76 offen sc1 lds', **meta)],
         [I(f'buffer_load_dwordx4 v2, {SWS}, s76 offen offset:1024 sc1 lds', **meta)]]
    return W, A
def fixscc(items):
    return items
def p3_reads(k):
    s = k & 1; pair = k >> 1; o = (k & 1) * 16384
    rng = ((pair % 5) * 32768, (pair % 5) * 32768 + 32768)
    r = []
    for n in range(4):
        d = 32 * s + 16 + 4 * n
        r.append(I(f'ds_read_b128 a[{d}:{d+3}], v16 offset:{o + 8192 + n*1024}', ldsr=(rng, f'Z{pair}')))
    for n in range(4):
        for e2 in range(2):
            d = 32 * s + 4 * n + 2 * e2
            r.append(I(f'ds_read_b64_tr_b16 a[{d}:{d+1}], v{12+n} offset:{o + e2*4096}', ldsr=(rng, f'Z{pair}')))
    return r
def p3_waits(fill, base, k):
    s = k & 1
    for n in range(1, 4): fill[base + 4 * n - 1].append(Wt(lg=rs('a', 32 * s + 4 * n, 4)))
def p3_w0(k):
    s = k & 1
    return Wt(lg=rs('a', 32 * s + 16, 16) | rs('a', 32 * s, 4))
def p3_mf(k, czero=False):
    s = k & 1; mf = []
    for mb in range(4):
        for qb in range(4):
            D = vr('v', 64 + 16 * qb + 4 * mb, 4)
            mf.append(f'{MF} {D}, a[{32*s+4*mb}:{32*s+4*mb+3}], a[{32*s+16+4*qb}:{32*s+16+4*qb+3}], {"0" if czero else D}')
    return mf
def p3_pre():
    c = ['L_att_done:'] + stamp(14)
    c += ['s_and_b32 s8, s2, 7', 's_lshr_b32 s9, s2, 3', 's_lshr_b32 s64, s8, 1', 's_and_b32 s8, s8, 1', 's_lshl_b32 s8, s8, 3', 's_lshr_b32 s65, s9, 2', 's_add_u32 s65, s65, s8', 's_and_b32 s66, s9, 3']
    c += ['s_cmp_eq_u32 s64, 2', 's_cselect_b32 s67, 42, 43', 's_mul_i32 s8, s64, 43', 's_lshl_b32 s70, s8, 15', 's_mov_b32 s46, 0x400000', 's_cmp_eq_u32 s64, 3', 's_cselect_b32 s8, 128, s8',
          f's_cselect_b32 s44, s{pW2}, s{pWO}', f's_cselect_b32 s45, s{pW2+1}, s{pWO+1}', f's_cselect_b32 s46, {1376*1024}, s46', 's_cselect_b32 s70, 0, s70', 's_mov_b32 s47, 0x00020000']
    c += [f's_mul_i32 s69, s65, {AF_TILE}', 's_lshl_b32 s8, s8, 13', 's_add_u32 s69, s69, s8', 's_lshl_b32 s74, s4, 11', 's_add_u32 s69, s69, s74', f's_add_u32 s69, s69, {AF_OFF}']
    c += ['s_lshl_b32 s8, s4, 13', 's_lshl_b32 s9, s66, 8', 's_add_u32 s8, s8, s9', 'v_lshrrev_b32 v28, 4, v1', 'v_and_b32 v29, 15, v1',
          'v_lshlrev_b32 v30, 1, v28', 'v_xor_b32 v30, v30, v29', 'v_lshlrev_b32 v30, 4, v30', 'v_lshl_add_u32 v31, v28, 10, s8', 'v_add_u32 v4, v31, v30',
          'v_xor_b32 v30, 128, v30', 'v_add_u32 v5, v31, v30', f'v_add_u32 v5, {4*1024-1024}, v5']
    c += ['v_lshrrev_b32 v30, 2, v1', 'v_and_b32 v31, 7, v30', 'v_lshlrev_b32 v30, 8, v30', 'v_and_b32 v32, 3, v1', 'v_lshl_add_u32 v30, v32, 3, v30',
          's_lshr_b32 s8, s4, 1', 's_lshl_b32 s8, s8, 2', 'v_xor_b32 v31, s8, v31']
    for mb in range(4): c += [f'v_xor_b32 v32, {mb}, v31', f'v_lshl_add_u32 v{6+mb}, v32, 5, v30', f'v_mov_b32 v{12+mb}, v{6+mb}']
    c += ['s_lshl_b32 s8, s7, 12', 'v_add_u32 v10, s8, v2', 'v_mov_b32 v16, v10']
    c += [Wt(vm={'ALL'}, lg={'ALL'}), 's_barrier', 's_cmp_eq_u32 s4, 0', 's_cbranch_scc1 L_sigB', 'L_sigB_ret:']
    c += stamp(15)
    if STOP == 'att': c += ['s_endpgm']
    c += ['s_sub_u32 s8, 15, s65', 's_min_u32 s8, s8, s65', 's_lshl_b32 s8, s8, 8', f's_add_u32 s8, s8, {F_H}', 's_lshl_b32 s9, s65, 8', f's_add_u32 s9, s9, {F_CTX}',
          's_cmp_eq_u32 s64, 3', 's_cselect_b32 s78, s8, s9', 'v_and_b32 v33, 31, v1', 'v_lshlrev_b32 v33, 2, v33']
    for part in range(2):
        c += ['s_mov_b32 s68, 0']
        if part == 1: c += stamp(16) + ['s_branch L_poll3', 'L_poll3_ret:'] + stamp(17)
        for pair in range(5):
            c += [f's_add_u32 s71, s74, {pair * 32768}']
            for kk in range(2):
                W, A = p3_dma(pair, kk)
                for it in (W if part == 0 else A): c += it
                if part == 0: c += ['s_add_u32 s68, s68, 1']
    c += ['s_mov_b32 s71, s74', 's_mov_b32 s72, 0', 's_mov_b32 s73, 21']
    c += [Wt(vm={('L', 'Z0')}), 's_barrier'] + stamp(18) + p3_reads(0) + [Wt(lg={'ALL'})]
    mf = p3_mf(0, czero=True)
    fill = {g: [] for g in range(16)}
    for n, x in enumerate(p3_reads(1)): fill[n + 1].append(x)
    fill[15].append(p3_w0(1))
    c += gaps(mf, fill)
    return c
def p3_body(w):
    mf = p3_mf(2 * w + 1) + p3_mf(2 * w + 2)
    fill = {g: [] for g in range(32)}
    fill[0] += [Wt(vm={('L', f'Z{w+1}')}, lg={'ALL'}), 's_barrier', 's_add_u32 s72, s72, 32768', 's_cmp_eq_u32 s72, 163840', 's_cselect_b32 s72, 0, s72']
    pre = [f'v_add_u32 v{12+n}, s72, v{6+n}' for n in range(4)] + ['v_add_u32 v16, s72, v10']
    fill[0] += pre[:2]; fill[1] += pre[2:4]; fill[2] += pre[4:]
    R1 = p3_reads(2 * w + 2); R2 = p3_reads(2 * w + 3)
    items = []
    for kk in range(2):
        W, A = p3_dma(w + 5, kk); items += W + A
    for g, x in zip(range(3, 15), R1): fill[g].append(x)
    for g, x in zip(range(16, 28), R2): fill[g].append(x)
    for g, it in zip([1, 2, 15, 28, 29, 30, 31, 31], items):
        for x in it: fill[g].append(x)
    p3_waits(fill, 0, 2 * w + 1); fill[15].append(p3_w0(2 * w + 2)); p3_waits(fill, 16, 2 * w + 2); fill[31].insert(0, p3_w0(2 * w + 3))
    fill[31] = [fill[31][0]] + [I(x) if isinstance(x, str) else x for x in fill[31][1:]]
    fill[31][0].meta['keep'] = True
    c = ['L_p3loop:'] + gaps(mf, fill)
    c += ['s_add_u32 s71, s71, 32768', 's_sub_u32 s3, s71, s74', 's_cmp_eq_u32 s3, 163840', 's_cselect_b32 s71, s74, s71',
          's_sub_u32 s73, s73, 1', 's_cmp_lg_u32 s73, 0', 's_cbranch_scc1 L_p3loop']
    return c
def p3_epi():
    c = stamp(19)
    c += ['s_lshl_b32 s8, s65, 2', 's_add_u32 s8, s8, s66', 's_lshl_b32 s9, s8, 18', f's_add_u32 s9, s9, {PART_OFF}', 's_lshl_b32 s10, s4, 12', 's_add_u32 s9, s9, s10',
          's_lshl_b32 s10, s64, 14', 's_add_u32 s10, s10, s9', 's_lshl_b32 s11, s64, 16', 's_add_u32 s11, s11, s9']
    c += ['s_lshl_b32 s78, s8, 8', f's_add_u32 s78, s78, {F_P3}', 's_lshl_b32 s77, s64, 2', 's_add_u32 s77, s77, s78', 'v_and_b32 v48, 3, v1', 'v_lshlrev_b32 v48, 2, v48']
    for qb in range(4):
        for mb in range(4):
            r = 64 + 16 * qb + 4 * mb
            c.append(I(f'buffer_store_dwordx4 v[{r}:{r+3}], v2, {SWS}, s10 offen offset:{mb*1024} sc1', tok='PART'))
        c += ['s_add_u32 s10, s10, 65536']
    c += srd(44, pX, 0x200000) + srd(48, pB2, 1024) + srd(60, pOUT, 0x200000)
    c += ['s_lshl_b32 s12, s65, 7', 's_lshl_b32 s13, s7, 6', 's_add_u32 s12, s12, s13', 's_lshl_b32 s13, s64, 4', 's_add_u32 s12, s12, s13', 's_lshl_b32 s12, s12, 10',
          's_lshl_b32 s13, s66, 8', 's_lshr_b32 s14, s4, 1', 's_lshl_b32 s14, s14, 7', 's_add_u32 s13, s13, s14', 's_add_u32 s12, s12, s13',
          'v_lshlrev_b32 v30, 3, v28', 'v_lshl_add_u32 v31, v29, 10, v30']
    for mb in range(4):
        c += [f'buffer_load_dwordx2 v[{32+2*mb}:{33+2*mb}], v31, {SA}, s12 offen offset:{mb*32}', f'buffer_load_dwordx2 v[{40+2*mb}:{41+2*mb}], v30, {SB}, s13 offen offset:{mb*32}']
    c += [Wt(vm={('L', 'PART')}), 's_barrier', 's_cmp_eq_u32 s4, 0', 's_cbranch_scc1 L_sig3', 'L_sig3_ret:'] + stamp(20) + ['s_branch L_poll4', 'L_poll4_ret:'] + stamp(21)
    for src in range(4):
        for mb in range(4):
            r = 128 + 16 * src + 4 * mb
            c += [f'buffer_load_dwordx4 v[{r}:{r+3}], v2, {SWS}, s11 offen offset:{mb*1024} sc1']
        c += ['s_add_u32 s11, s11, 16384']
    c += [Wt(vm=rs('v', 32, 16))]
    for mb in range(4):
        for j in range(2):
            c += [f'v_lshlrev_b32 v{64+4*mb+2*j}, 16, v{32+2*mb+j}', f'v_and_b32 v{65+4*mb+2*j}, 0xffff0000, v{32+2*mb+j}',
                  f'v_lshlrev_b32 v{80+4*mb+2*j}, 16, v{40+2*mb+j}', f'v_and_b32 v{81+4*mb+2*j}, 0xffff0000, v{40+2*mb+j}']
    c += [Wt(vm=rs('v', 128, 32))]
    for n in range(16): c += [f'v_add_f32 v{128+n}, v{128+n}, v{144+n}']
    c += [Wt(vm=rs('v', 160, 16))]
    for n in range(16): c += [f'v_add_f32 v{128+n}, v{128+n}, v{160+n}']
    c += [Wt(vm=rs('v', 176, 16))]
    for n in range(16): c += [f'v_add_f32 v{176+n}, v{176+n}, v{80+n}']
    for n in range(16): c += [f'v_mul_f32 v{144+n}, {f2u(-LOG2E)}, v{176+n}']
    for n in range(16): c += [f'v_exp_f32 v{144+n}, v{144+n}']
    for n in range(16): c += [f'v_add_f32 v{144+n}, 1.0, v{144+n}']
    for n in range(16): c += [f'v_rcp_f32 v{144+n}, v{144+n}']
    for n in range(16): c += [f'v_mul_f32 v{144+n}, v{144+n}, v{176+n}']
    for n in range(16): c += [f'v_fmac_f32 v{64+n}, v{128+n}, v{144+n}']
    for mb in range(4):
        c += [f'v_cvt_pk_bf16_f32 v{32+2*mb}, v{64+4*mb}, v{65+4*mb}', f'v_cvt_pk_bf16_f32 v{33+2*mb}, v{66+4*mb}, v{67+4*mb}',
              f'buffer_store_dwordx2 v[{32+2*mb}:{33+2*mb}], v31, {SC}, s12 offen offset:{mb*32}']
    c += stamp(22) + ['L_end:', 's_endpgm']
    return c

def build():
    b0 = blk('p0', p0())
    tr_p1 = {}
    for wc in range(2):
        t = [blk(f'p1pre{wc}', p1_pre(wc))]
        blk(f'p1lab{wc}', [f'L_p1loop_{wc}:'])
        for q in range(4): P.add(f'p1k{wc}_{q}', p1_kstep(q, wc, False))
        P.add(f'p1be{wc}', p1_backedge(wc))
        for k in range(12):
            t.append(P.inst(f'p1k{wc}_{k&3}', p1_kstep(k, wc, False)))
            if k & 3 == 3: t.append(P.inst(f'p1be{wc}', p1_backedge(wc)))
        for k in range(12, 16): t.append(blk(f'p1k{wc}_{k}', p1_kstep(k, wc, True)))
        if wc == 0: blk('p1j', ['s_branch L_p1_done'])
        tr_p1[wc] = t
    mid = [blk('trans12', trans12())]
    for k in range(16): mid.append(blk(f'p2a{k}', p2a_kstep(k)))
    mid.append(blk('p2aepi', p2a_epi()))
    if STOP == 'p2a': blk('stop', ['s_waitcnt vmcnt(0)', 's_endpgm'])
    sigA = [I('s_lshl_b32 s3, s4, 1', keep=True), 's_sub_u32 s3, s91, s3', 's_cmp_eq_u32 s3, 1', 's_cbranch_scc1 L_sigA', 'L_sigA_ret:']
    def first(g0, tile): return att_iter(0, g0, pv=False, site='first', extra_need=({('L', 'H'), ('L', 'CTX0')} if tile else ()), post_bar=sigA) + [I('s_cmp_eq_u32 s90, 0'), I('s_cbranch_scc1 L_last')]
    def mid1(t, g0): return [I('L_loop:')] + att_iter(t, g0, site='mid1') + [I('s_sub_u32 s90, s90, 1'), I('s_cmp_eq_u32 s90, 0'), I('s_cbranch_scc1 L_mask0'), I('L_mask0_ret:')]
    def mid0(t, g0): return att_iter(t, g0, site='mid0') + [I('s_cmp_lg_u32 s90, 0'), I('s_cbranch_scc1 L_loop')]
    def last(t, g0): return [I('L_last:'), frag_read('V', t - 1, 1, 3, t, g0), I('s_nop 3')] + [I(x) for x in mask_ops(1, 1)] + [Wt(lg=rs('v', FR(1), 4))] + att_iter(t, g0, qk=False, nxt_qk=False, site='last')
    P.add('pre', att_pre(0)); P.add('first', first(0, 0)); P.add('mid1', mid1(1, 0)); P.add('mid0', mid0(2, 0)); P.add('last', last(3, 0))
    P.add('stats', att_stats(0)); P.add('drain', att_drain(4, 0, 0)); P.add('epi0', att_epi(0, 4, 0, 0)); P.add('epi1', att_epi(1, 4, 0, 0)); P.add('next', att_next())
    m0 = ['L_mask0:', 's_nop 3'] + mask_ops(0, 0) + ['s_branch L_mask0_ret']
    mp = ['L_mask_pre:'] + mask_ops(0, 0) + ['s_branch L_mask_pre_ret']
    def tile(n, g0, tl, cc):
        t = []
        pre = P.inst('pre', att_pre(g0)); t.append(pre)
        t.append(P.inst('first', first(g0, tl)))
        it = 1
        while it < n - 1:
            t.append(P.inst('mid1', mid1(it, g0)))
            if it == n - 3: t.append(('mask0', P.canon['mask0']))
            t.append(P.inst('mid0', mid0(it + 1, g0)))
            it += 2
        t.append(P.inst('last', last(n - 1, g0)))
        t += [P.inst('stats', att_stats(tl)), P.inst('drain', att_drain(n, g0, tl)), P.inst(f'epi{cc}', att_epi(cc, n, g0, tl)), P.inst('next', att_next())]
        return t
    p3 = [blk('p3pre', p3_pre())]
    P.add('p3body', p3_body(0))
    for w in range(21): p3.append(P.inst('p3body', p3_body(w)))
    p3.append(blk('p3epi', p3_epi()))
    P.add('mask0', m0); P.add('maskpre', mp); P.add('rare0', rare(0)); P.add('rare1', rare(1))
    ool = []
    ool += ['L_zero:'] + [f'v_mov_b32 v{40+j}, 0' for j in range(4)] + ['s_lshl_b32 s8, s4, 10', f's_add_u32 s8, s8, {FL_OFF}']
    for j in range(9): ool += [f'buffer_store_dwordx4 v[40:43], v2, {SWS}, s8 offen sc1', 's_add_u32 s8, s8, 4096']
    ool += ['s_waitcnt vmcnt(0)', 's_lshl_b32 s8, s4, 2', 'v_mov_b32 v3, 1', f'buffer_store_dword v3, off, {SDBG}, s8 sc1', 's_branch L_zero_ret']
    for wc in range(2):
        ool += [f'L_sigxn_{wc}:', 'v_cmp_ne_u32 vcc, 0, v3', 's_cmp_eq_u64 vcc, -1', f's_cbranch_scc1 L_pollz_{wc}_ret'] + poll_stub(f'L_pollz_{wc}', 'v35', '0', SDBG)
        ool += sig_stub(f'L_pollz_{wc}_ret', f'L_sigxn_ret_{wc}', ['s_lshr_b32 s8, s2, 4', 's_lshl_b32 s8, s8, 8', 's_and_b32 s9, s2, 15', 's_lshl_b32 s9, s9, 2', 's_add_u32 s8, s8, s9', f's_add_u32 s8, s8, {F_XN}'], ['s8'])
        ool += poll_stub(f'L_pollxn_{wc}', 'v35', 's78')
    ool += sig_stub('L_sigkv', 'L_sigkv_ret', ['s_lshl_b32 s8, s5, 8', 's_lshl_b32 s9, s6, 2', 's_add_u32 s8, s8, s9', f's_add_u32 s8, s8, {F_KV}'], ['s8'])
    ool += poll_stub('L_pollkv', 'v39', 's78')
    ool += sig_stub('L_sigA', 'L_sigA_ret', ['s_lshl_b32 s9, s5, 2', 's_lshl_b32 s8, s96, 8', 's_add_u32 s8, s8, s9', f's_add_u32 s8, s8, {F_CTX}', 's_lshl_b32 s10, s6, 8', 's_add_u32 s9, s9, s10', f's_add_u32 s9, s9, {F_H}'], ['s8', 's9'])
    ool += sig_stub('L_sigB', 'L_sigB_ret', ['s_lshl_b32 s9, s5, 2', 's_lshl_b32 s8, s92, 8', 's_add_u32 s8, s8, s9', f's_add_u32 s8, s8, {F_CTX}'], ['s8'])
    ool += poll_stub('L_poll3', 'v33', 's78')
    ool += sig_stub('L_sig3', 'L_sig3_ret', [], ['s77'])
    ool += poll_stub('L_poll4', 'v48', 's78')
    P.add('ool', ool)
    traces = []
    for wc, nA, nB in ((0, 6, 2), (1, 8, 4), (0, 4, 6), (1, 6, 6)):
        traces.append([b0] + tr_p1[wc] + mid + tile(nA, 0, 0, wc) + tile(nB, nA, 1, wc) + p3)
    P.resolve(traces)
    errs = P.check(traces)
    errs += P.check([[('rare0', P.canon['rare0'])], [('rare1', P.canon['rare1'])], [('maskpre', P.canon['maskpre'])], [('ool', P.canon['ool'])]])
    return errs

errs = build()
seen = set()
for e in errs:
    k = e.split(' ', 1)[1]
    if k not in seen:
        seen.add(k); print('ERR', e)
hdr = open('recurrent_scan__compressed_kv_cla__dense_activation_gelu__prompt.s.ref').read().split('; Override')[0]
s = hdr + '; @launch grid=(256,1,1) block=(256,1,1) lds=163840\n'
s += f'.amdgcn_target "amdgcn-amd-amdhsa--gfx950"\n.text\n.globl {NAME}\n.p2align 8\n.type {NAME},@function\n{NAME}:\n'
s += P.text()
s += f'''.section .rodata,"a"
.p2align 6
.amdhsa_kernel {NAME}
  .amdhsa_next_free_vgpr 512
  .amdhsa_next_free_sgpr 102
  .amdhsa_accum_offset 256
  .amdhsa_group_segment_fixed_size 0
  .amdhsa_kernarg_size 112
  .amdhsa_user_sgpr_count 2
  .amdhsa_user_sgpr_kernarg_segment_ptr 1
  .amdhsa_system_sgpr_workgroup_id_x 1
.end_amdhsa_kernel
'''
open(OUT, 'w').write(s)
print('written', OUT, len(s), 'bytes;', len(seen), 'errors')
```

```python
import sys, math, struct
from asmlib import *

STOP = None
for a in sys.argv[1:]:
    if a.startswith('stop='): STOP = a.split('=')[1]
TS = 'ts=1' in sys.argv
TS2 = 'ts=2' in sys.argv
DBGMAP = {0: 4, 2: 5, 3: 6, 5: 7, 6: 8, 14: 10, 18: 11, 19: 12, 21: 13, 22: 14}
def stamp(j, dyn=False):
    if TS2:
        if j not in DBGMAP: return []
        r = ['s_memrealtime s[98:99]', 's_waitcnt lgkmcnt(0)', 'v_mov_b32 v0, s98']
        if dyn: r += ['s_lshl_b32 s98, s91, 2', 's_add_u32 s98, s98, s101', f'buffer_store_dword v0, off, s[56:59], s98 offset:{4*DBGMAP[j]}']
        else: r += [f'buffer_store_dword v0, off, s[56:59], s101 offset:{4*DBGMAP[j]}']
        return r
    if not TS: return []
    r = ['s_memrealtime s[98:99]', 's_waitcnt lgkmcnt(0)', 'v_mov_b32 v0, s98']
    if dyn: r += ['s_lshl_b32 s98, s91, 4', 's_add_u32 s98, s98, s101', f'buffer_store_dword v0, off, s[52:55], s98 offset:{4*j}']
    else: r += [f'buffer_store_dword v0, off, s[52:55], s101 offset:{4*j}']
    return r
OUT = [a for a in sys.argv[1:] if a.endswith('.s')]
OUT = OUT[0] if OUT else 'out.s'
NAME = 'recurrent_scan__compressed_kv_cla__dense_activation_gelu__prompt_kernel'

def f2u(x): return '0x%08x' % struct.unpack('<I', struct.pack('<f', x))[0]
LOG2E = math.log2(math.e)
CSC = LOG2E / math.sqrt(128.0)

XN_OFF = 0
KV_OFF = 2 << 20
AF_OFF = 34 << 20
AF_TILE = 171 * 8192
PART_OFF = 58 << 20
OOB = 0x40000000
FL_OFF = 76 << 20
F_XN, F_KV, F_H, F_CTX, F_P3 = [FL_OFF + 256 * n for n in (0, 16, 48, 56, 72)]

sW, sH, sI = 's4', 's5', 's6'
pX, pCKV, pWQ, pWUK, pWUV, pWO, pW1, pB1, pW2, pB2, pOUT, pDBG, pWS = 16, 18, 20, 22, 24, 26, 30, 32, 34, 36, 38, 40, 42
SA, SB, SWS, SDBG, SC = 's[44:47]', 's[48:51]', 's[52:55]', 's[56:59]', 's[60:63]'
def srd(base, ptr, size):
    return [f's_mov_b32 s{base}, s{ptr}', f's_mov_b32 s{base+1}, s{ptr+1}', f's_mov_b32 s{base+2}, {size}', f's_mov_b32 s{base+3}, 0x00020000']
vLANE, vL16 = 'v1', 'v2'
MF = 'v_mfma_f32_16x16x32_bf16'

P = Prog()
TR = []
def blk(name, ins):
    ins = P.add(name, ins)
    return (name, ins)

def signal(dw_sreg_or_imm, val_text, lab):
    return []

def p0():
    c = []
    c += ['s_cmp_ge_u32 s2, 256', 's_cbranch_scc1 L_end']
    c += ['s_load_dwordx16 s[16:31], s[0:1], 0', 's_load_dwordx8 s[32:39], s[0:1], 64', 's_load_dwordx4 s[40:43], s[0:1], 96']
    c += ['v_and_b32 v1, 63, v0', 'v_lshrrev_b32 v3, 6, v0', 'v_lshlrev_b32 v2, 4, v1', 'v_readfirstlane_b32 s4, v3']
    c += ['s_and_b32 s8, s2, 7', 's_lshr_b32 s9, s2, 3', 's_and_b32 s10, s9, 3', 's_lshl_b32 s5, s8, 2', 's_add_u32 s5, s5, s10', 's_lshr_b32 s6, s9, 2']
    c += ['v_lshrrev_b32 v28, 4, v1', 'v_and_b32 v29, 15, v1', 'v_lshrrev_b32 v30, 3, v1', 'v_and_b32 v31, 7, v1']
    c += ['s_lshl_b32 s8, s6, 8', 's_lshl_b32 s9, s4, 6', 's_add_u32 s8, s8, s9', 's_lshl_b32 s8, s8, 10']
    c += ['v_lshlrev_b32 v32, 10, v30', 'v_add_u32 v32, s8, v32', 'v_xor_b32 v33, v31, v28', 'v_lshlrev_b32 v33, 4, v33', 'v_xor_b32 v34, 64, v33']
    for j in range(8):
        c += [f'v_add_u32 v{4+j}, v32, v{33 + (j & 1)}']
        k = 8 * j * 1024 - (j & 3) * 1024
        if k: c += [f'v_add_u32 v{4+j}, {k}, v{4+j}']
    c += ['s_lshr_b32 s9, s4, 1', 's_lshl_b32 s9, s9, 17', 's_lshl_b32 s10, s5, 8', 's_add_u32 s9, s9, s10']
    c += ['v_lshlrev_b32 v32, 13, v28', 'v_add_u32 v32, s9, v32', 'v_lshlrev_b32 v33, 1, v28', 'v_xor_b32 v33, v33, v29', 'v_lshlrev_b32 v33, 4, v33', 'v_xor_b32 v34, 128, v33']
    for j in range(4):
        c += [f'v_add_u32 v{12+j}, v32, v{33 + (j >> 1)}']
        k = 4 * j * 8192 - j * 1024
        if k: c += [f'v_add_u32 v{12+j}, {k}, v{12+j}']
    c += ['s_waitcnt lgkmcnt(0)']
    c += srd(44, pCKV, 0x200000)
    c += ['s_and_b32 s7, s4, 1', 's_cmp_eq_u32 s7, 0', f's_cselect_b32 s48, s{pWUK}, s{pWUV}', f's_cselect_b32 s49, s{pWUK+1}, s{pWUV+1}', 's_mov_b32 s50, 0x400000', 's_mov_b32 s51, 0x00020000']
    c += srd(52, pWS, 0x10000000) + srd(56, pDBG, 256) + srd(60, pX, 0x200000)
    c += ['s_lshl_b32 s101, s2, 2', 's_add_u32 s101, s101, s4', 's_lshl_b32 s101, s101, 7', f's_add_u32 s101, s101, {96 << 20}'] + stamp(0) if TS else []
    if TS2: c += ['s_lshl_b32 s101, s2, 2', 's_add_u32 s101, s101, s4', 's_cmp_eq_u32 s101, 513', 's_cselect_b32 s101, 0, 4096'] + stamp(0)
    c += ['s_cmp_eq_u32 s2, 0', 's_cbranch_scc1 L_zero', 'L_zero_ret:']
    c += ['s_lshl_b32 s8, s2, 3', 's_lshl_b32 s9, s4, 1', 's_add_u32 s8, s8, s9', 's_lshl_b32 s9, s8, 10']
    c += [f'buffer_load_dwordx4 v[40:43], v2, {SC}, s9 offen', f'buffer_load_dwordx4 v[44:47], v2, {SC}, s9 offen offset:1024']
    c += ['s_lshl_b32 s64, s7, 13', 's_lshr_b32 s10, s4, 1', 's_lshl_b32 s10, s10, 12', 's_add_u32 s64, s64, s10', 's_lshl_b32 s65, s4, 13']
    def wdma(k):
        r = [f's_add_u32 m0, s64, {(k & 3) * 16384}', f's_mov_b32 s66, {k << 18}']
        for j in range(4):
            r.append(I(f'buffer_load_dwordx4 v{12+j}, {SB}, s66 offen offset:{j*1024} lds', tok=f'W{k}', ldsw=(((k & 3) * 16384, (k & 3) * 16384 + 16384), f'W{k}')))
        return r
    def cdma(u, half):
        base = 65536 + (u % 3) * 32768
        r = [f's_add_u32 m0, s65, {base + half * 4096}', f's_mov_b32 s67, {u * 128}']
        for j in range(4):
            r.append(I(f'buffer_load_dwordx4 v{4+half*4+j}, {SA}, s67 offen offset:{j*1024} lds', tok=f'C{u}', ldsw=((base, base + 32768), f'C{u}')))
        return r
    c += wdma(0) + cdma(0, 0) + cdma(0, 1) + wdma(1) + cdma(1, 0) + cdma(1, 1) + wdma(2) + wdma(3) + cdma(2, 0)
    c += ['s_lshr_b32 s10, s4, 1', 's_lshl_b32 s10, s10, 14', 'v_lshlrev_b32 v32, 7, v29', 'v_add_u32 v32, s10, v32',
          'v_lshrrev_b32 v33, 1, v29', 'v_xor_b32 v33, v33, v28', 'v_lshlrev_b32 v33, 4, v33', 'v_add_u32 v16, v32, v33', 'v_xor_b32 v17, 64, v16',
          'v_add_u32 v18, 65536, v16', 'v_add_u32 v19, 65536, v17']
    c += ['v_bfe_u32 v32, v1, 2, 2', 'v_and_b32 v33, 3, v1', 'v_lshl_add_u32 v34, v28, 3, v32', 'v_lshlrev_b32 v34, 8, v34', 'v_lshl_add_u32 v34, v33, 3, v34',
          's_lshl_b32 s10, s7, 13', 'v_add_u32 v34, s10, v34', 'v_and_b32 v35, 1, v28', 'v_lshl_or_b32 v35, v35, 2, v32']
    for db in range(8):
        c += [f'v_xor_b32 v36, {db}, v35', f'v_lshl_add_u32 v{20+db}, v36, 5, v34']
    for r in range(88, 256): c += [f'v_mov_b32 v{r}, 0']
    for r in range(192, 232): c += [f'v_accvgpr_write_b32 a{r}, 0']
    c += [Wt(vm=rs('v', 40, 8))]
    for row in range(2):
        for q in range(4):
            s = 40 + 4 * row + q; d = 48 + 8 * row + 2 * q
            c += [f'v_lshlrev_b32 v{d}, 16, v{s}', f'v_and_b32 v{d+1}, 0xffff0000, v{s}']
    def tree(dst, src):
        r = []
        for row in range(2):
            b = src + 8 * row
            r += [f'v_add_f32 v{dst+row}, v{b}, v{b+1}']
        for k in range(2, 8):
            for row in range(2):
                r += [f'v_add_f32 v{dst+row}, v{dst+row}, v{src + 8*row + k}']
        return r
    def allred(a):
        r = []
        for m in ('quad_perm:[1,0,3,2]', 'quad_perm:[2,3,0,1]', 'row_half_mirror', 'row_mirror'):
            r += ['s_nop 0']
            for row in range(2):
                r += [f'v_add_f32_dpp v{a+row}, v{a+row}, v{a+row} {m} row_mask:0xf bank_mask:0xf']
        for pl in ('v_permlane16_swap_b32', 'v_permlane32_swap_b32'):
            for row in range(2): r += [f'v_mov_b32 v{a+2+row}, v{a+row}']
            r += ['s_nop 0']
            for row in range(2): r += [f'{pl} v{a+2+row}, v{a+row}']
            for row in range(2): r += [f'v_add_f32 v{a+row}, v{a+row}, v{a+2+row}']
        return r
    c += tree(64, 48) + allred(64)
    c += [f'v_mul_f32 v64, {f2u(1/512)}, v64', f'v_mul_f32 v65, {f2u(1/512)}, v65']
    for row in range(2):
        for k in range(8):
            c += [f'v_sub_f32 v{72+8*row+k}, v{48+8*row+k}, v{64+row}']
    for row in range(2):
        for k in range(8):
            c += [f'v_mul_f32 v{72+8*row+k}, v{72+8*row+k}, v{72+8*row+k}']
    c += tree(68, 72) + allred(68)
    c += [f'v_mul_f32 v68, {f2u(1/512)}, v68', f'v_mul_f32 v69, {f2u(1/512)}, v69']
    c += ['v_cvt_pk_bf16_f32 v70, v64, v65', 'v_cvt_pk_bf16_f32 v71, v68, v69',
          'v_lshlrev_b32 v64, 16, v70', 'v_and_b32 v65, 0xffff0000, v70', 'v_lshlrev_b32 v68, 16, v71', 'v_and_b32 v69, 0xffff0000, v71',
          f'v_add_f32 v68, {f2u(1e-5)}, v68', f'v_add_f32 v69, {f2u(1e-5)}, v69', 'v_cvt_pk_bf16_f32 v71, v68, v69',
          'v_lshlrev_b32 v68, 16, v71', 'v_and_b32 v69, 0xffff0000, v71', 'v_sqrt_f32 v68, v68', 'v_sqrt_f32 v69, v69', 's_nop 0',
          'v_cvt_pk_bf16_f32 v71, v68, v69', 'v_lshlrev_b32 v68, 16, v71', 'v_and_b32 v69, 0xffff0000, v71', 'v_rcp_f32 v68, v68', 'v_rcp_f32 v69, v69', 's_nop 0',
          f'v_mul_f32 v68, {f2u(CSC)}, v68', f'v_mul_f32 v69, {f2u(CSC)}, v69']
    for row in range(2):
        b = 48 + 8 * row
        for k in range(8): c += [f'v_sub_f32 v{b+k}, v{b+k}, v{64+row}']
        for q in range(4): c += [f'v_cvt_pk_bf16_f32 v{72+q}, v{b+2*q}, v{b+2*q+1}']
        for q in range(4): c += [f'v_lshlrev_b32 v{b+2*q}, 16, v{72+q}', f'v_and_b32 v{b+2*q+1}, 0xffff0000, v{72+q}']
        for k in range(8): c += [f'v_mul_f32 v{b+k}, v{b+k}, v{68+row}']
        for q in range(4): c += [f'v_cvt_pk_bf16_f32 v{40+4*row+q}, v{b+2*q}, v{b+2*q+1}']
    c += ['s_lshr_b32 s9, s8, 6', 's_lshl_b32 s9, s9, 16', 's_bfe_u32 s10, s8, 0x20004', 's_lshl_b32 s10, s10, 10', 's_add_u32 s9, s9, s10',
          's_and_b32 s10, s8, 15', 's_lshl_b32 s10, s10, 4', 's_add_u32 s9, s9, s10',
          'v_lshrrev_b32 v32, 2, v1', 'v_lshlrev_b32 v32, 12, v32', 'v_and_b32 v33, 3, v1', 'v_lshl_add_u32 v32, v33, 8, v32']
    c += [I(f'buffer_store_dwordx4 v[40:43], v32, {SWS}, s9 offen sc1', tok='LN'), I(f'buffer_store_dwordx4 v[44:47], v32, {SWS}, s9 offen offset:16 sc1', tok='LN')]
    c += ['s_nop 1']
    for r in range(40, 88): c += [f'v_mov_b32 v{r}, 0']
    c += ['s_mov_b32 s66, %d' % (4 << 18), 's_mov_b32 s67, 256', 's_mov_b32 s68, %d' % (65536 + 2 * 32768), 's_mov_b32 s69, 65536', 's_mov_b32 s70, 0']
    c += ['v_and_b32 v35, 3, v1', 'v_lshlrev_b32 v35, 2, v35']
    c += stamp(1)
    c += [Wt(vm={('L', 'W0'), ('L', 'C0')}), 's_barrier'] + stamp(2)
    c += ['s_cmp_eq_u32 s7, 1', 's_cbranch_scc1 L_p1_1']
    return c

def accreg(pos, half):
    if half == 0: return ('v', 128 + 4 * pos)
    return ('v', 40 + 4 * pos) if pos < 22 else ('a', 192 + 4 * (pos - 22))
def p1_reads(k, wc):
    s = k & 1; u = k >> 1; e = k & 1
    cb = 65536 + (u % 3) * 32768; wb = (k & 3) * 16384
    T = []; D = []
    for n in range(8):
        for e2 in range(2):
            T.append(I(f'ds_read_b64_tr_b16 a[{96+64*s+4*n+2*e2}:{96+64*s+4*n+2*e2+1}], v{20+n} offset:{wb + e2*1024}', ldsr=((wb, wb + 16384), f'W{k}')))
        D.append(I(f'ds_read_b128 a[{64+64*s+4*n}:{64+64*s+4*n+3}], v{18+e} offset:{n*2048}', ldsr=((cb, cb + 32768), f'C{u}')))
    return T, D
def p1_pre(wc):
    T, D = p1_reads(0, wc)
    return [f'L_p1_{wc}:'] + T + D + [Wt(lg={'ALL'})]
P2SLOT = [98304 + ((k + 3) % 5) * 11264 for k in range(16)]
def p2a_dma(k):
    b = P2SLOT[k]
    r = [[f's_add_u32 m0, s71, {b}', f's_mov_b32 s72, {k << 18}',
          I(f'buffer_load_dwordx4 v28, {SA}, s72 offen lds', tok=f'X{k}', ldsw=((b, b + 11264), f'X{k}'))],
         [I(f'buffer_load_dwordx4 v29, {SA}, s72 offen offset:1024 lds', tok=f'X{k}', ldsw=((b, b + 11264), f'X{k}'))],
         [f's_add_u32 m0, s73, {b + 8192}', f's_mov_b32 s72, {k * 32 * 2752}',
          I(f'buffer_load_dwordx4 v30, {SC}, s72 offen lds', tok=f'X{k}', ldsw=((b, b + 11264), f'X{k}'))]]
    return r
def p2a_xn(k):
    r = []
    for qb in range(4):
        pre = [f's_add_u32 s75, s74, {k * 4096}'] if qb == 0 else []
        a = 16 * (k & 3) + 4 * qb
        r.append(pre + [I(f'buffer_load_dwordx4 a[{a}:{a+3}], v2, {SWS}, s75 offen offset:{qb*1024} sc1')])
    return r

def p1_kstep(k, wc, peeled):
    s = k & 1; q = k & 3
    mf = []
    for i in range(8):
        for j in range(8):
            pos = (i >> 1) * 8 + j if wc == 1 else 4 * j + (i >> 1)
            kk, r = accreg(pos, i & 1)
            cf = lambda n: f'a[{64+64*s+4*n}:{64+64*s+4*n+3}]'
            wf = lambda n: f'a[{96+64*s+4*n}:{96+64*s+4*n+3}]'
            A, B = (cf(i), wf(j)) if wc == 1 else (wf(i), cf(j))
            mf.append(f'{MF} {vr(kk, r, 4)}, {A}, {B}, {vr(kk, r, 4)}')
    fill = {g: [] for g in range(64)}
    need = set()
    if k < 15: need = {('L', f'W{k+1}'), ('L', f'C{(k+1)>>1}')}
    if k == 3: need |= {('L', 'LN'), ('v', 3)}
    if q == 1 and not peeled: fill[1].append(poll_issue('v35', '0', SDBG))
    if k == 14: need.add(('L', 'C8'))
    fill[0] += [Wt(vm=need), 's_barrier']
    gl = [8 * n + 4 for n in range(8)]
    free = [g for g in range(2, 63) if g not in gl]
    if k < 15:
        T, D = p1_reads(k + 1, wc)
        seq = []
        for n in range(8): seq += [T[2*n], T[2*n+1], D[n]]
        for g, x in zip(free, seq): fill[g].append(x)
        fill[62].append(Wt(lg={'ALL'}))
    if not peeled:
        wb = q * 16384
        fill[gl[0] - 1] += [f's_add_u32 m0, s64, {wb}']
        for j in range(4):
            fill[gl[j]].append(I(f'buffer_load_dwordx4 v{12+j}, {SB}, s66 offen offset:{j*1024} lds', tok=f'W{k+4}', ldsw=((wb, wb + 16384), f'W{k+4}')))
        fill[gl[3] + 1] += [f's_add_u32 s66, s66, {1 << 18}']
        half = 0 if (k & 1) else 1
        u = (k - 1) // 2 + 3 if (k & 1) else k // 2 + 2
        cb = 65536 + (u % 3) * 32768
        if k & 1:
            fill[gl[3] + 2] += ['s_add_u32 s68, s68, 32768', 's_cmp_eq_u32 s68, 163840']
            fill[gl[3] + 3] += ['s_cselect_b32 s68, 65536, s68', 's_add_u32 s67, s67, 128']
            fill[gl[3] + 4] += ['s_cmp_eq_u32 s67, 1024', f's_cselect_b32 s67, {OOB}, s67']
        fill[gl[4] - 2] += ['s_add_u32 s3, s68, s65']
        fill[gl[4] - 1] += [f's_add_u32 m0, s3, {half * 4096}']
        for j in range(4):
            fill[gl[4 + j]].append(I(f'buffer_load_dwordx4 v{4+half*4+j}, {SA}, s67 offen offset:{j*1024} lds', tok=f'C{u}', ldsw=((cb, cb + 32768), f'C{u}')))
    if (k & 1) == 0 and k < 14:
        fill[5] += ['s_add_u32 s69, s69, 32768', 's_cmp_eq_u32 s69, 163840', 's_cselect_b32 s69, 65536, s69']
        fill[30] += ['v_add_u32 v18, s69, v16', 'v_add_u32 v19, s69, v17']
    if peeled:
        if k == 12:
            x = []
            x += srd(44, pWQ, 0x400000) + srd(60, pW1, 512 * 2752)
            x += ['s_lshl_b32 s71, s4, 11', 's_min_u32 s73, s4, 2', 's_lshl_b32 s73, s73, 10']
            x += ['s_sub_u32 s3, 15, s6', 's_cmp_eq_u32 s7, 0', 's_cselect_b32 s3, s3, s6', 's_lshl_b32 s3, s3, 1', 's_lshr_b32 s8, s4, 1', 's_add_u32 s3, s3, s8', 's_lshl_b32 s74, s3, 16']
            x += ['s_lshl_b32 s8, s4, 16', 's_lshl_b32 s9, s5, 8', 's_add_u32 s8, s8, s9', 's_lshl_b32 s9, s7, 2', 's_mul_i32 s10, s5, 96']
            for n, t in enumerate(x): fill[33 + n // 2].append(t)
            y = ['v_lshrrev_b32 v32, 4, v1', 'v_and_b32 v33, 15, v1', 'v_or_b32 v34, s9, v32', 'v_lshlrev_b32 v34, 1, v34', 'v_xor_b32 v34, v34, v33',
                 'v_lshlrev_b32 v34, 4, v34', 'v_lshl_add_u32 v34, v32, 13, v34', 'v_add_u32 v28, s8, v34', f'v_add_u32 v29, {4*8192-1024}, v28']
            y += ['v_lshrrev_b32 v35, 4, s73', 'v_add_u32 v35, v35, v1', 'v_mul_u32_u24 v36, 10923, v35', 'v_lshrrev_b32 v36, 16, v36',
                  'v_mul_u32_u24 v37, 6, v36', 'v_sub_u32 v37, v35, v37', 'v_and_b32 v38, 19, v36', 'v_and_b32 v39, 4, v36', 'v_lshl_or_b32 v38, v39, 1, v38',
                  'v_and_b32 v39, 8, v36', 'v_lshrrev_b32 v39, 1, v39', 'v_or_b32 v38, v38, v39', 'v_mul_u32_u24 v38, 2752, v38', 'v_lshl_add_u32 v38, v37, 4, v38', 'v_add_u32 v30, s10, v38']
            y += ['v_and_b32 v35, 32, v1', 'v_lshrrev_b32 v35, 1, v35', 'v_bfe_u32 v36, v1, 2, 3', 'v_or_b32 v35, v35, v36', 'v_mul_u32_u24 v35, 96, v35',
                  'v_and_b32 v36, 3, v1', 'v_lshl_add_u32 v35, v36, 3, v35', f'v_add_u32 v31, {98304+8192}, v35']
            for n, t in enumerate(y): fill[46 + n // 2].append(t)
        if k == 13:
            fill[30] += ['s_lshr_b32 s78, s74, 17', 's_lshl_b32 s78, s78, 8', f's_add_u32 s78, s78, {F_XN}', 'v_and_b32 v35, 15, v1', 'v_lshlrev_b32 v35, 2, v35']
            fill[32] += [poll_issue('v35', 's78')]
        if k == 14:
            fill[28] += poll_check(f'L_pollxn_{wc}')
        if k in (14, 15):
            items = []
            for kk in ((0, 1) if k == 14 else (2, 3, 4)): items += p2a_dma(kk)
            for kk in ((0, 1) if k == 14 else (2,)): items += p2a_xn(kk)
            gs = [g for g in range(30 if k == 14 else 2, 62, 2)]
            for g, it in zip(gs, items):
                for x in it:
                    x = I(x) if isinstance(x, str) else x
                    (fill[g - 1] if x.kind == 'salu' else fill[g]).append(x)
    return gaps(mf, fill)

def p1_backedge(wc):
    return ['s_add_u32 s70, s70, 1', 's_lshl_b32 s3, s4, 2', 's_add_u32 s3, s3, s70', 's_cmp_eq_u32 s3, 1', f's_cbranch_scc1 L_sigxn_{wc}', f'L_sigxn_ret_{wc}:',
            's_cmp_lt_u32 s70, 3', f's_cbranch_scc1 L_p1loop_{wc}']

def sig_stub(lab, ret, pre, offs):
    return [f'{lab}:'] + pre + ['s_mov_b64 s[98:99], exec', 's_mov_b64 exec, 1', 'v_mov_b32 v3, 1'] + \
           [f'buffer_store_dword v3, off, {SWS}, {o} sc1' for o in offs] + ['s_mov_b64 exec, s[98:99]', f's_branch {ret}']
def poll_issue(vo, offs, srd_=None): return f'buffer_load_dword v3, {vo}, {srd_ or SWS}, {offs} offen sc1'
def poll_check(lab):
    return [Wt(vm={('v', 3)}), I('v_cmp_ne_u32 vcc, 0, v3', keep=True), 's_cmp_eq_u64 vcc, -1', f's_cbranch_scc0 {lab}', f'{lab}_ret:']
def poll_stub(lab, vo, offs, srd_=None):
    return [f'{lab}:', 's_mov_b32 s100, 0x40000', f'{lab}_l:', poll_issue(vo, offs, srd_), 's_waitcnt vmcnt(0)',
            'v_cmp_ne_u32 vcc, 0, v3', 's_cmp_eq_u64 vcc, -1', f's_cbranch_scc1 {lab}_ret',
            's_sub_u32 s100, s100, 1', 's_cmp_lg_u32 s100, 0', f's_cbranch_scc1 {lab}_l', f's_branch {lab}_ret']

def p2a_reads(k):
    s = k & 1; b = P2SLOT[k]; o = b - 98304
    T = []
    for n in range(11):
        for e2 in range(2):
            d = 64 + 44 * s + 4 * n + 2 * e2
            if n < 8: t = f'ds_read_b64_tr_b16 a[{d}:{d+1}], v{20+n} offset:{o + e2*1024}'
            else: t = f'ds_read_b64_tr_b16 a[{d}:{d+1}], v31 offset:{o + e2*768 + (n-8)*32}'
            T.append(I(t, ldsr=((b, b + 11264), f'X{k}')))
    return T
def trans12():
    c = ['L_p1_done:'] + stamp(3)
    c += ['s_lshl_b32 s3, s7, 13', 's_sub_u32 s3, 98304, s3']
    for n in range(8): c += [f'v_add_u32 v{20+n}, s3, v{20+n}']
    c += [Wt(vm={('L', 'X0')}), 's_barrier']
    c += p2a_reads(0)
    c += ['s_lshl_b32 s76, s5, 20', 's_lshl_b32 s3, s6, 17', 's_add_u32 s76, s76, s3', 's_lshr_b32 s3, s4, 1', 's_lshl_b32 s3, s3, 16', 's_add_u32 s76, s76, s3',
          's_lshl_b32 s3, s7, 13', 's_add_u32 s76, s76, s3', f's_add_u32 s76, s76, {KV_OFF}']
    for pos in range(32):
        e = 128 + 4 * pos
        kk, o = accreg(pos, 1)
        if kk == 'a':
            for r in range(4): c += [f'v_accvgpr_read_b32 v{32+r}, a{o+r}']
            o = 32
        c += [f'v_cvt_pk_bf16_f32 v{e}, v{e}, v{e+1}', f'v_cvt_pk_bf16_f32 v{e+1}, v{e+2}, v{e+3}',
              f'v_cvt_pk_bf16_f32 v{e+2}, v{o}, v{o+1}', f'v_cvt_pk_bf16_f32 v{e+3}, v{o+2}, v{o+3}']
    c += [Wt(lg={'ALL'}, vm=rs('a', 0, 16))] + stamp(4)
    return c

def qacc(db, qb):
    qi = db * 4 + qb
    return ('v', 88 + 4 * qi) if qi < 10 else ('a', 152 + 4 * (qi - 10))
def facc(fb, qb): return ('v', 40 + 4 * (fb * 4 + qb))
def p2a_kstep(k):
    s = k & 1
    mf = []
    for n in range(11):
        for qb in range(4):
            kk, r = qacc(n, qb) if n < 8 else facc(n - 8, qb)
            x = 16 * (k & 3) + 4 * qb
            C = '0' if k == 0 else vr(kk, r, 4)
            mf.append(f'{MF} {vr(kk, r, 4)}, a[{64+44*s+4*n}:{64+44*s+4*n+3}], a[{x}:{x+3}], {C}')
    fill = {g: [] for g in range(44)}
    need = set()
    if k < 15: need.add(('L', f'X{k+1}'))
    if k == 13: need.add(('L', 'KV'))
    fill[0] += [Wt(vm=need), 's_barrier']
    items = []
    if k + 5 <= 15: items += p2a_dma(k + 5)
    if k + 3 <= 15: items += p2a_xn(k + 3)
    for n in range(3 * k, min(3 * k + 3, 32)):
        pre = [f's_add_u32 s77, s76, {(n >> 3) * 16384 + ((n >> 2) & 1) * 4096}'] if (n % 4 == 0 or n % 3 == 0) else []
        items.append(pre + [I(f'buffer_store_dwordx4 v[{128+4*n}:{131+4*n}], v2, {SWS}, s77 offen offset:{(n&3)*1024} sc1', tok='KV')])
    if k == 13:
        fill[1] += [I('s_cmp_eq_u32 s4, 0', keep=True), 's_cbranch_scc1 L_sigkv', 'L_sigkv_ret:']
        items.append(srd(48, pB1, 2752)[:2] + ['v_lshrrev_b32 v38, 4, v1'])
        items.append(srd(48, pB1, 2752)[2:] + ['v_lshlrev_b32 v38, 3, v38'])
        items.append(['s_mul_i32 s3, s5, 96'])
        for fb in range(3): items.append([f'buffer_load_dwordx2 v[{32+2*fb}:{33+2*fb}], v38, {SB}, s3 offen offset:{fb*32}'])
    if k == 15:
        fill[30] += ['s_lshl_b32 s78, s5, 8', f's_add_u32 s78, s78, {F_KV}', 'v_and_b32 v39, 7, v1', 'v_lshlrev_b32 v39, 2, v39']
        fill[40] += [poll_issue('v39', 's78')]
    T = p2a_reads(k + 1) if k < 15 else []
    g = 2; ti = 0; ii = 0
    while ti < len(T) or ii < len(items):
        for _ in range(2):
            if ti < len(T): fill[g].append(T[ti]); ti += 1; g += 1
        if ii < len(items):
            for x in items[ii]:
                x = I(x) if isinstance(x, str) else x
                (fill[g - 1] if x.kind == 'salu' else fill[g]).append(x)
            ii += 1; g += 1
    if k < 15: fill[42].append(Wt(lg={'ALL'}, vm=rs('a', 16 * ((k + 1) & 3), 16)))
    return gaps(mf, fill)

def Sreg(b, kb, qb): return 64 + 32 * b + (qb * 2 + kb) * 4
def Preg(b, qb): return 128 + 16 * b + 4 * qb
def NM(qb): return 160 + 4 * qb
def FR(g): return 176 + 4 * (g & 7)
TMP = 208
def Lr(b, qb): return 224 + 4 * b + qb
vCUR, vNXT, vDEL, vNEG = 'v232', 'v233', 'v234', 'v235'
def Oreg(db, qb): return (db * 4 + qb) * 4
def Qreg(ds, qb): return 128 + (ds * 4 + qb) * 4
def kslot(x): return ((x >> 1) & 1) * 65536 + (x & 1) * 16384
def kv_dma(kind, x, gidx):
    pass

def p2a_epi():
    c = ['s_nop 7'] + stamp(5)
    for ds in range(4):
        for qb in range(4):
            d = 128 + (ds * 4 + qb) * 4
            for hf in range(2):
                kk, r = qacc(2 * ds + hf, qb)
                if kk == 'a':
                    t = 192 + 4 * ((ds * 8 + qb * 2 + hf) & 3)
                    for j in range(4): c += [f'v_accvgpr_read_b32 v{t+j}, a{r+j}']
                    r = t
                c += [f'v_cvt_pk_bf16_f32 v{d+2*hf}, v{r}, v{r+1}', f'v_cvt_pk_bf16_f32 v{d+2*hf+1}, v{r+2}, v{r+3}']
    c += poll_check('L_pollkv') + stamp(23)
    c += ['s_lshr_b32 s8, s4, 1', 's_lshl_b32 s9, s8, 12', 's_lshl_b32 s10, s7, 13', 's_add_u32 s80, s9, s10', 's_add_u32 s81, s80, 65536',
          's_lshl_b32 s84, s5, 20', 's_lshl_b32 s10, s7, 15', 's_add_u32 s84, s84, s10', 's_add_u32 s84, s84, s9', f's_add_u32 s84, s84, {KV_OFF}',
          's_add_u32 s88, s84, 8192']
    for kind, x in (('K', 0), ('K', 1), ('V', 0), ('K', 2), ('K', 3), ('V', 1)):
        lb = kslot(x) + (32768 if kind == 'V' else 0)
        go = (x >> 1) * 65536 + (x & 1) * 16384
        c += [f's_add_u32 m0, s80, {lb}', f's_add_u32 s3, s{84 if kind == "K" else 88}, {go}']
        for j in range(4):
            c.append(I(f'buffer_load_dwordx4 v2, {SWS}, s3 offen offset:{j*1024} sc1 lds', tok=f'{kind}{x}', ldsw=((lb, lb + 16384), f'{kind}{x}')))
    c += ['s_add_u32 s82, s84, 131072', 's_sub_u32 s83, 14, s6', 's_add_u32 s85, s6, 1', 's_add_u32 s86, s88, 65536', 's_sub_u32 s87, 15, s6', 's_add_u32 s89, s6, 1']
    c += ['s_lshl_b32 s3, s4, 14', 's_add_u32 s3, s3, 98304', 'v_add_u32 v39, s3, v2', 's_barrier']
    for f in range(16):
        c.append(I(f'ds_write_b128 v39, v[{128+4*f}:{131+4*f}] offset:{f*1024}', ldsw=((98304, 163840), 'QX')))
    c += ['s_lshl_b32 s3, s8, 15', 's_add_u32 s3, s3, 98304', 'v_add_u32 v39, s3, v2', Wt(lg={'ALL'}), 's_barrier']
    for f in range(32):
        c.append(I(f'ds_read_b128 a[{128+4*f}:{131+4*f}], v39 offset:{f*1024}', ldsr=((98304, 163840), 'QX')))
    c += stamp(24)
    K0 = -2.0 * LOG2E * math.sqrt(2.0 / math.pi); K1 = K0 * 0.044715
    c += [f's_mov_b32 s8, {f2u(1.0 / CSC)}', f's_mov_b32 s9, {f2u(K1)}', f'v_mov_b32 v38, {f2u(K0)}', Wt(vm=rs('v', 32, 6))]
    for fb in range(3):
        for j in range(2):
            c += [f'v_lshlrev_b32 v{192+4*fb+2*j}, 16, v{32+2*fb+j}', f'v_and_b32 v{193+4*fb+2*j}, 0xffff0000, v{32+2*fb+j}']
    for fb in range(3):
        for qb in range(0, 4, 2):
            R = [facc(fb, qb + (n >> 2))[1] + (n & 3) for n in range(8)]
            Tm = [208 + n for n in range(8)]
            st = [lambda x, t, n: f'v_fma_f32 v{x}, v{x}, s8, v{192+4*fb+(n&3)}', lambda x, t, n: f'v_mul_f32 v{t}, v{x}, v{x}',
                  lambda x, t, n: f'v_fma_f32 v{t}, v{t}, s9, v38', lambda x, t, n: f'v_mul_f32 v{t}, v{t}, v{x}', lambda x, t, n: f'v_exp_f32 v{t}, v{t}',
                  lambda x, t, n: f'v_add_f32 v{t}, 1.0, v{t}', lambda x, t, n: f'v_rcp_f32 v{t}, v{t}', lambda x, t, n: f'v_mul_f32 v{x}, v{x}, v{t}']
            for f in st:
                for n in range(8): c.append(f(R[n], Tm[n], n))
            for q in range(2):
                r = facc(fb, qb + q)[1]
                c += [f'v_cvt_pk_bf16_f32 v{r}, v{r}, v{r+1}', f'v_cvt_pk_bf16_f32 v{r+1}, v{r+2}, v{r+3}']
    c += stamp(25)
    c += ['s_lshr_b32 s3, s74, 17', f's_mul_i32 s8, s3, {AF_TILE}', 's_lshr_b32 s3, s4, 1', 's_lshl_b32 s3, s3, 12', 's_add_u32 s8, s8, s3', f's_add_u32 s8, s8, {AF_OFF + 128*8192}',
          's_mul_i32 s9, s5, 3']
    for fb in range(3):
        c += [f's_add_u32 s10, s9, {fb}', 's_lshr_b32 s3, s10, 1', 's_lshl_b32 s3, s3, 13', 's_add_u32 s3, s3, s8', 's_and_b32 s11, s10, 1', 's_lshl_b32 s11, s11, 3', 's_add_u32 s3, s3, s11',
              's_cmp_lt_u32 s10, 86', f's_cselect_b32 s3, s3, {OOB}']
        for qb in range(4):
            r = facc(fb, qb)[1]
            c.append(I(f'buffer_store_dwordx2 v[{r}:{r+1}], v2, {SWS}, s3 offen offset:{qb*1024} sc1', tok='H'))
    c += ['s_lshl_b32 s3, s7, 13', f'v_add_u32 {vCUR}, s3, v2', f'v_xor_b32 {vNXT}, 0x10000, {vCUR}',
          's_lshr_b32 s3, s4, 1', 's_sub_u32 s3, s7, s3', 's_lshl_b32 s3, s3, 6', 'v_lshrrev_b32 v38, 4, v1', 'v_lshlrev_b32 v38, 2, v38', 'v_and_b32 v39, 15, v1',
          'v_sub_u32 v38, v38, v39', f'v_add_u32 {vDEL}, s3, v38', f'v_mov_b32 {vNEG}, 0xff800000',
          f's_mov_b32 s94, {f2u(2.0**30)}', 's_mov_b32 s91, 0', 's_sub_u32 s92, 15, s6']
    return c

def kread(g, t, kb, ds, g0, p):
    x = g0 + t
    return x
def frag_read(kind, step, idx, g, it, g0):
    m2 = it & ~1
    rel = step - m2
    reg = vCUR if rel in (0, 1) else vNXT
    off = (rel & 1) * 16384 + (32768 if kind == 'V' else 0) + idx * 1024
    x = g0 + step
    lb = kslot(x) + (32768 if kind == 'V' else 0)
    return I(f'ds_read_b128 v[{FR(g)}:{FR(g)+3}], {reg} offset:{off}', ldsr=((lb, lb + 16384), f'{kind}{x}'))
def qk_group(b, kb, ds, g, czero=False):
    r = []
    for qb in range(4):
        D = vr('v', Sreg(b, kb, qb), 4)
        C = D if ds > 0 else ('0' if czero else vr('v', NM(qb), 4))
        r.append(f'{MF} {D}, v[{FR(g)}:{FR(g)+3}], a[{Qreg(ds, qb)}:{Qreg(ds, qb)+3}], {C}')
    return r
def pv_group(b, db, g):
    r = []
    for qb in range(4):
        D = vr('a', Oreg(db, qb), 4)
        r.append(f'{MF} {D}, v[{FR(g)}:{FR(g)+3}], v[{Preg(b, qb)}:{Preg(b, qb)+3}], {D}')
    return r
def softmax_ops(b):
    E = []; A = []; C = []
    for e in range(32):
        qb = e >> 3; s = Sreg(b, 0, qb) + (e & 7); t = TMP + (e & 15)
        E.append(f'v_exp_f32 v{t}, v{s}')
        src = Lr(1 - b, qb) if (e & 7) == 0 else Lr(b, qb)
        A.append(f'v_add_f32 v{Lr(b, qb)}, v{src}, v{t}')
        if e & 1: C.append(f'v_cvt_pk_bf16_f32 v{Preg(b, qb) + ((e & 7) >> 1)}, v{t-1}, v{t}')
    return E, A, C
def check_ops(b, site):
    return [f'v_max3_f32 v236, v{Lr(b,0)}, v{Lr(b,1)}, v{Lr(b,2)}', f'v_max_f32 v236, v236, v{Lr(b,3)}', 'v_cmp_lt_f32 vcc, s94, v236',
            f's_cbranch_vccnz L_rare_{site}', f'L_rare_ret_{site}:']
def stream_adv(base):
    o, n, o2, n2 = base, base + 1, base + 2, base + 3
    return [f's_add_u32 s{o}, s{o}, 65536', f's_sub_u32 s{n}, s{n}, 1', f's_cmp_eq_u32 s{n}, 0', f's_cselect_b32 s{o}, s{o2}, s{o}', f's_cselect_b32 s{n}, s{n2}, s{n}',
            f's_cselect_b32 s{o2}, {OOB}, s{o2}', f's_cselect_b32 s{n2}, -1, s{n2}']

def att_iter(t, g0, qk=True, pv=True, sm=True, nxt_qk=True, nxt_pv=True, site=None, extra_need=(), post_bar=(), dma=True, ntot=99):
    p = t & 1
    groups = []
    for n in range(8):
        if qk: groups.append(('K', n, 2 * n))
        if pv: groups.append(('V', n, 2 * n + 1))
    look = []
    if nxt_qk: look.append(('K', t + 2, 0, 0))
    if nxt_pv: look.append(('V', t, 0, 1))
    if nxt_qk: look.append(('K', t + 2, 1, 2))
    if not nxt_qk and nxt_pv: look += [('V', t, 1, 3)]
    have = 3 if (qk and pv) else 2
    mf = []
    for kind, n, g in groups:
        mf += qk_group(1 - p, n >> 2, n & 3, g) if kind == 'K' else pv_group(1 - p, n, g)
    NG = len(groups); NM_ = len(mf)
    fill = {g: [] for g in range(NM_)}
    need = {('L', f'K{g0+t+2}'), ('L', f'V{g0+t}')} | set(extra_need)
    fill[0] += [Wt(vm=need), 's_barrier'] + list(post_bar)
    reads = [frag_read(k, (t + 1) if k == 'K' else (t - 1), n, g, t, g0) for (k, n, g) in groups[have:]]
    reads += [frag_read(k, st_, n, g, t, g0) for (k, st_, n, g) in look]
    for gi in range(NG):
        if gi < len(reads): fill[4 * gi + 1].append(reads[gi])
        nx = groups[gi + 1][2] if gi + 1 < NG else (look[0][3] if look else None)
        if nx is not None: fill[4 * gi + 3].append(Wt(lg=rs('v', FR(nx), 4)))
    for x in reads[NG:]:
        fill[NM_ - 2].append(x)
    if dma:
        step = NM_ // 8
        gl = [step * n + step - 1 for n in range(8)]
        for half, (kind, x, sb, so) in enumerate((('K', g0 + t + 4, 's80', 's82'), ('V', g0 + t + 2, 's81', 's86'))):
            lo = p * 16384 + (32768 if kind == 'V' else 0)
            lb = kslot(x) + (32768 if kind == 'V' else 0)
            g = gl[4 * half]
            fill[g - 1] += [f's_add_u32 m0, {sb}, {lo}', f's_add_u32 s95, {so}, {p * 16384}']
            for j in range(4):
                fill[gl[4 * half + j]].append(I(f'buffer_load_dwordx4 v2, {SWS}, s95 offen offset:{j*1024} sc1 lds', tok=f'{kind}{x}', ldsw=((lb, lb + 16384), f'{kind}{x}')))
        if p == 1:
            a1 = stream_adv(82); a2 = stream_adv(86)
            g = gl[4] + 1
            for n, x in enumerate(a1): fill[g + n].append(x)
            tail_salu = a2 + ['s_xor_b32 s80, s80, 0x10000', 's_xor_b32 s81, s81, 0x10000']
        else: tail_salu = []
    else: tail_salu = []
    tail = []
    if sm:
        E, A, C = softmax_ops(p)
        if NM_ == 64:
            for e in range(32):
                fill[2 * e].append(E[e]); fill[2 * e + 1].append(A[e])
                if e & 1: fill[2 * e + 1].append(C[e >> 1])
        else:
            for e in range(32):
                fill[e].append(E[e])
                if e > 0:
                    fill[e].append(A[e - 1])
                    if (e - 1) & 1: fill[e].append(C[(e - 1) >> 1])
            tail += ['s_nop 0', A[31], C[15]]
    out = gaps(mf, fill) + [I(x) for x in tail]
    if p == 1: out += [I(f'v_xor_b32 {vCUR}, 0x10000, {vCUR}'), I(f'v_xor_b32 {vNXT}, 0x10000, {vNXT}')]
    out += [I(x) for x in tail_salu]
    if sm: out += [I(x) for x in check_ops(p, site)]
    return out

def mask_ops(b, e):
    c = []
    n = 0
    for qb in range(4):
        for kb in range(2):
            for r in range(4):
                k = 16 * qb - 16 * kb - 32 * e - r
                sp = ['s[8:9]', 's[10:11]', 's[12:13]', 's[14:15]'][n & 3]
                c.append((k, sp, Sreg(b, kb, qb) + r)); n += 1
    out = []
    def cmp(k, sp):
        if -16 <= k <= 64: return [f'v_cmp_lt_i32 {sp}, {k}, {vDEL}']
        return [f's_mov_b32 s3, {k}', f'v_cmp_lt_i32 {sp}, s3, {vDEL}']
    for i in range(len(c) + 3):
        if i < len(c): out += cmp(c[i][0], c[i][1])
        if i == len(c): out += ['s_nop 0']
        if i >= 3: out += [f'v_cndmask_b32 v{c[i-3][2]}, v{c[i-3][2]}, {vNEG}, {c[i-3][1]}']
    return out
def rowmax(b, dst):
    c = []
    for qb in range(4):
        s = Sreg(b, 0, qb)
        c += [f'v_max3_f32 v{dst+qb}, v{s}, v{s+1}, v{s+2}']
    for j in (3, 5):
        for qb in range(4):
            s = Sreg(b, 0, qb); c += [f'v_max3_f32 v{dst+qb}, v{dst+qb}, v{s+j}, v{s+j+1}']
    for qb in range(4):
        s = Sreg(b, 0, qb); c += [f'v_max_f32 v{dst+qb}, v{dst+qb}, v{s+7}']
    c += xlane('v_max_f32', dst)
    return c
def xlane(op, dst):
    c = []
    for pl in ('v_permlane16_swap_b32', 'v_permlane32_swap_b32'):
        for qb in range(4): c += [f'v_mov_b32 v{dst+4+qb}, v{dst+qb}']
        for qb in range(4): c += [f'{pl} v{dst+4+qb}, v{dst+qb}']
        for qb in range(4): c += [f'{op} v{dst+qb}, v{dst+qb}, v{dst+4+qb}']
    return c

def att_pre(g0):
    c = ['L_tile:'] + stamp(6, True) + [Wt(vm={('L', f'K{g0}'), ('L', f'K{g0+1}')}, lg={'ALL'}), 's_barrier']
    rd = [frag_read('K', 0, n, n, 0, g0) for n in range(8)]
    c += rd
    mf = []
    for n in range(8): mf += qk_group(0, n >> 2, n & 3, n, czero=True)
    fill = {g: [] for g in range(32)}
    z = [f'v_accvgpr_write_b32 a{r}, 0' for r in range(128)]
    for g in range(32): fill[g] += z[2 * g:2 * g + 2]
    for n in range(1, 8): fill[4 * n - 1].append(Wt(lg=rs('v', FR(n), 4)))
    fill[17].append(frag_read('K', 1, 0, 0, 0, g0)); fill[21].append(frag_read('K', 1, 1, 2, 0, g0))
    c += [Wt(lg=rs('v', FR(0), 4))] + gaps(mf, fill) + z[64:]
    for qb in range(4): c += [f'v_mov_b32 v{Lr(1, qb)}, 0']
    c += ['s_cmp_eq_u32 s92, 0', 's_cbranch_scc1 L_mask_pre', 'L_mask_pre_ret:']
    c += rowmax(0, TMP)
    for qb in range(4): c += [f'v_max_f32 v{TMP+qb}, {f2u(-3.0e38)}, v{TMP+qb}']
    for qb in range(4):
        for r in range(4): c += [f'v_sub_f32 v{NM(qb)+r}, 0, v{TMP+qb}']
        for j in range(8): c += [f'v_sub_f32 v{Sreg(0,0,qb)+j}, v{Sreg(0,0,qb)+j}, v{TMP+qb}']
    c += ['s_mov_b32 s90, s92', Wt(lg=rs('v', FR(0), 4))] + stamp(7, True)
    return c

def rare(p):
    c = [f'L_rare{p}:', 's_nop 7']
    c += rowmax(p, TMP)
    for qb in range(4): c += [f'v_max_f32 v{TMP+qb}, 0, v{TMP+qb}']
    for qb in range(4): c += [f'v_exp_f32 v{TMP+4+qb}, -v{TMP+qb}']
    for qb in range(4):
        for r in range(4): c += [f'v_sub_f32 v{NM(qb)+r}, v{NM(qb)+r}, v{TMP+qb}']
        for b in range(2):
            for j in range(8): c += [f'v_sub_f32 v{Sreg(b,0,qb)+j}, v{Sreg(b,0,qb)+j}, v{TMP+qb}']
        c += [f'v_mul_f32 v{Lr(1-p, qb)}, v{Lr(1-p, qb)}, v{TMP+4+qb}']
    for db in range(8):
        for qb in range(4):
            o = Oreg(db, qb)
            for r in range(4): c += [f'v_accvgpr_read_b32 v{TMP+8+r}, a{o+r}']
            for r in range(4): c += [f'v_mul_f32 v{TMP+8+r}, v{TMP+8+r}, v{TMP+4+qb}']
            for r in range(4): c += [f'v_accvgpr_write_b32 a{o+r}, v{TMP+8+r}']
    E, A, C = softmax_ops(p)
    for e0 in range(0, 32, 8):
        c += E[e0:e0 + 8] + ['s_nop 0'] + A[e0:e0 + 8] + C[e0 // 2:e0 // 2 + 4]
    c += ['s_nop 1']
    a, b = (('first', 'mid0') if p == 0 else ('mid1', 'last'))
    c += ['s_cmp_eq_u32 s93, 0', f's_cbranch_scc1 L_rare_ret_{a}', f's_branch L_rare_ret_{b}']
    c += [f'L_rare_{a}:', 's_mov_b32 s93, 0', f's_branch L_rare{p}', f'L_rare_{b}:', 's_mov_b32 s93, 1', f's_branch L_rare{p}']
    return c

def att_stats(tile):
    c = stamp(8, True)
    for qb in range(4): c += [f'v_mov_b32 v{TMP+qb}, v{Lr(1, qb)}']
    c += xlane('v_add_f32', TMP)
    for qb in range(4): c += [f'v_mov_b32 v{TMP+4+qb}, v{NM(qb)}']
    c += ['s_lshl_b32 s3, s4, 11', 's_add_u32 s3, s3, 131072', 'v_add_u32 v237, s3, v2', 'v_xor_b32 v238, 2048, v237']
    c += [I(f'ds_write_b128 v237, v[{TMP}:{TMP+3}]', ldsw=((131072, 139264), f'ST{tile}'), tok='ST'), I(f'ds_write_b128 v237, v[{TMP+4}:{TMP+7}] offset:1024', ldsw=((131072, 139264), f'ST{tile}'), tok='ST')]
    c += [Wt(lg={('L', 'ST')})]
    return c
def att_drain(n, g0, tile):
    t = n
    groups = [('V', k, 2 * k + 1) for k in range(8)]
    mf = []
    for kind, k, g in groups: mf += pv_group(1, k, g)
    fill = {g: [] for g in range(32)}
    fill[0] += ['s_barrier']
    reads = [frag_read('V', t - 1, k, g, t, g0) for (_, k, g) in groups[2:]]
    for gi in range(8):
        if gi < len(reads): fill[4 * gi + 1].append(reads[gi])
        if gi + 1 < 8: fill[4 * gi + 3].append(Wt(lg=rs('v', FR(groups[gi + 1][2]), 4)))
    fill[2] += [I('ds_read_b128 v[64:67], v238', ldsr=((131072, 139264), f'ST{tile}'))]
    fill[3] += [I('ds_read_b128 v[68:71], v238 offset:1024', ldsr=((131072, 139264), f'ST{tile}'))]
    fill[8] += [Wt(lg=rs('v', 64, 8))]
    w = []
    for qb in range(4): w += [f'v_min_f32 v{72+qb}, v{TMP+4+qb}, v{68+qb}']
    for qb in range(4): w += [f'v_sub_f32 v{76+qb}, v{72+qb}, v{TMP+4+qb}', f'v_sub_f32 v{80+qb}, v{72+qb}, v{68+qb}']
    for qb in range(4): w += [f'v_exp_f32 v{76+qb}, v{76+qb}', f'v_exp_f32 v{80+qb}, v{80+qb}']
    for qb in range(4): w += [f'v_mul_f32 v{72+qb}, v{76+qb}, v{TMP+qb}']
    for qb in range(4): w += [f'v_fmac_f32 v{72+qb}, v{80+qb}, v{64+qb}']
    for qb in range(4): w += [f'v_rcp_f32 v{72+qb}, v{72+qb}']
    for qb in range(4): w += [f'v_mul_f32 v{TMP+8+qb}, v{76+qb}, v{72+qb}', f'v_mul_f32 v{TMP+12+qb}, v{80+qb}, v{72+qb}']
    for n_, x in enumerate(w): fill[9 + n_ // 2].append(x)
    c = gaps(mf, fill)
    c += [I(x) for x in ['s_and_b32 s3, s81, 0x10000', 's_add_u32 s3, s3, 32768', 's_cmp_lt_u32 s4, 2', 's_cselect_b32 s3, 131072, s3', 's_lshl_b32 s8, s7, 14', 's_add_u32 s3, s3, s8',
          'v_add_u32 v237, s3, v2', 'v_xor_b32 v238, 16384, v237',
          f's_mul_i32 s8, s92, {AF_TILE}', 's_lshl_b32 s9, s5, 15', 's_add_u32 s8, s8, s9', 's_lshl_b32 s9, s7, 14', 's_add_u32 s8, s8, s9',
          's_lshr_b32 s9, s4, 1', 's_lshl_b32 s9, s9, 12', 's_add_u32 s8, s8, s9', f's_add_u32 s8, s8, {AF_OFF}', 's_add_u32 s9, s8, 8192']]
    c += [Wt(lg={'ALL'}), I('s_barrier'), I('s_cmp_eq_u32 s7, 1'), I('s_cbranch_scc1 L_epi_1')]
    return c
def att_epi(cc, n, g0, tile):
    vb = kslot(g0 + n - 2) + 32768
    c = [f'L_epi_{cc}:'] + stamp(9, True)
    for q in range(16):
        o = (1 - cc) * 64 + 4 * q
        c.append(I(f'ds_write_b128 v237, a[{o}:{o+3}] offset:{q*1024}', ldsw=[((131072, 163840), f'OX{tile}'), ((vb, vb + 32768), f'OY{tile}')]))
    for q in range(16):
        for r in range(4): c += [f'v_accvgpr_read_b32 v{128+4*q+r}, a{cc*64+4*q+r}']
    c += [Wt(lg={'ALL'}), 's_barrier']
    for q in range(16):
        c.append(I(f'ds_read_b128 v[{64+4*q}:{67+4*q}], v238 offset:{q*1024}', ldsr=[((131072, 163840), f'OX{tile}'), ((vb, vb + 32768), f'OY{tile}')]))
    for q in range(16):
        for r in range(4): c += [f'v_mul_f32 v{128+4*q+r}, v{128+4*q+r}, v{TMP+8+(q&3)}']
    for dsl in range(2):
        for qb in range(4):
            qa, qb2 = (2 * dsl) * 4 + qb, (2 * dsl + 1) * 4 + qb
            c += [Wt(lg=rs('v', 64 + 4 * qa, 4) | rs('v', 64 + 4 * qb2, 4))]
            for q in (qa, qb2):
                for r in range(4): c += [f'v_fmac_f32 v{128+4*q+r}, v{64+4*q+r}, v{TMP+12+qb}']
            d = 128 + 4 * qa; e = 128 + 4 * qb2
            c += [f'v_cvt_pk_bf16_f32 v{d}, v{d}, v{d+1}', f'v_cvt_pk_bf16_f32 v{d+1}, v{d+2}, v{d+3}', f'v_cvt_pk_bf16_f32 v{d+2}, v{e}, v{e+1}', f'v_cvt_pk_bf16_f32 v{d+3}, v{e+2}, v{e+3}']
            c.append(I(f'buffer_store_dwordx4 v[{d}:{d+3}], v2, {SWS}, s{8+dsl} offen offset:{qb*1024} sc1', tok=f'CTX{tile}'))
    if cc == 0: c += ['s_branch L_epi_done']
    return c
def att_next():
    c = ['L_epi_done:', 's_cmp_eq_u32 s91, 1', 's_cbranch_scc1 L_att_done']
    for r in range(64): c += [f'v_accvgpr_mov_b32 a{128+r}, a{192+r}']
    c += ['s_mov_b32 s91, 1', 's_mov_b32 s96, s92', 's_mov_b32 s92, s6', 's_branch L_tile']
    return c

def p3_dma(pair, kk):
    lb = (pair % 5) * 32768 + kk * 16384
    meta = dict(tok=f'Z{pair}', ldsw=(((pair % 5) * 32768, (pair % 5) * 32768 + 32768), f'Z{pair}'))
    W = [['s_lshl_b32 s75, s68, 15', 's_add_u32 s76, s75, s70', f's_add_u32 m0, s71, {kk*16384}', 's_cmp_lt_u32 s68, s67', f's_cselect_b32 s76, s76, {OOB}',
          I(f'buffer_load_dwordx4 v4, {SA}, s76 offen lds', **meta)],
         [I(f'buffer_load_dwordx4 v5, {SA}, s76 offen offset:1024 lds', **meta)]]
    A = [['s_lshl_b32 s75, s68, 13', 's_add_u32 s76, s75, s69', f's_add_u32 m0, s71, {kk*16384+8192}', 's_cmp_lt_u32 s68, s67', f's_cselect_b32 s76, s76, {OOB}', 's_add_u32 s68, s68, 1',
          I(f'buffer_load_dwordx4 v2, {SWS}, s76 offen sc1 lds', **meta)],
         [I(f'buffer_load_dwordx4 v2, {SWS}, s76 offen offset:1024 sc1 lds', **meta)]]
    return W, A
def fixscc(items):
    return items
def p3_reads(k):
    s = k & 1; pair = k >> 1; o = (k & 1) * 16384
    rng = ((pair % 5) * 32768, (pair % 5) * 32768 + 32768)
    r = []
    for n in range(4):
        d = 32 * s + 16 + 4 * n
        r.append(I(f'ds_read_b128 a[{d}:{d+3}], v16 offset:{o + 8192 + n*1024}', ldsr=(rng, f'Z{pair}')))
    for n in range(4):
        for e2 in range(2):
            d = 32 * s + 4 * n + 2 * e2
            r.append(I(f'ds_read_b64_tr_b16 a[{d}:{d+1}], v{12+n} offset:{o + e2*4096}', ldsr=(rng, f'Z{pair}')))
    return r
def p3_waits(fill, base, k):
    s = k & 1
    for n in range(1, 4): fill[base + 4 * n - 1].append(Wt(lg=rs('a', 32 * s + 4 * n, 4)))
def p3_w0(k):
    s = k & 1
    return Wt(lg=rs('a', 32 * s + 16, 16) | rs('a', 32 * s, 4))
def p3_mf(k, czero=False):
    s = k & 1; mf = []
    for mb in range(4):
        for qb in range(4):
            D = vr('v', 64 + 16 * qb + 4 * mb, 4)
            mf.append(f'{MF} {D}, a[{32*s+4*mb}:{32*s+4*mb+3}], a[{32*s+16+4*qb}:{32*s+16+4*qb+3}], {"0" if czero else D}')
    return mf
def p3_pre():
    c = ['L_att_done:'] + stamp(14)
    c += ['s_and_b32 s8, s2, 7', 's_lshr_b32 s9, s2, 3', 's_lshr_b32 s64, s8, 1', 's_and_b32 s8, s8, 1', 's_lshl_b32 s8, s8, 3', 's_lshr_b32 s65, s9, 2', 's_add_u32 s65, s65, s8', 's_and_b32 s66, s9, 3']
    c += ['s_cmp_eq_u32 s64, 2', 's_cselect_b32 s67, 42, 43', 's_mul_i32 s8, s64, 43', 's_lshl_b32 s70, s8, 15', 's_mov_b32 s46, 0x400000', 's_cmp_eq_u32 s64, 3', 's_cselect_b32 s8, 128, s8',
          f's_cselect_b32 s44, s{pW2}, s{pWO}', f's_cselect_b32 s45, s{pW2+1}, s{pWO+1}', f's_cselect_b32 s46, {1376*1024}, s46', 's_cselect_b32 s70, 0, s70', 's_mov_b32 s47, 0x00020000']
    c += [f's_mul_i32 s69, s65, {AF_TILE}', 's_lshl_b32 s8, s8, 13', 's_add_u32 s69, s69, s8', 's_lshl_b32 s74, s4, 11', 's_add_u32 s69, s69, s74', f's_add_u32 s69, s69, {AF_OFF}']
    c += ['s_lshl_b32 s8, s4, 13', 's_lshl_b32 s9, s66, 8', 's_add_u32 s8, s8, s9', 'v_lshrrev_b32 v28, 4, v1', 'v_and_b32 v29, 15, v1',
          'v_lshlrev_b32 v30, 1, v28', 'v_xor_b32 v30, v30, v29', 'v_lshlrev_b32 v30, 4, v30', 'v_lshl_add_u32 v31, v28, 10, s8', 'v_add_u32 v4, v31, v30',
          'v_xor_b32 v30, 128, v30', 'v_add_u32 v5, v31, v30', f'v_add_u32 v5, {4*1024-1024}, v5']
    c += ['v_lshrrev_b32 v30, 2, v1', 'v_and_b32 v31, 7, v30', 'v_lshlrev_b32 v30, 8, v30', 'v_and_b32 v32, 3, v1', 'v_lshl_add_u32 v30, v32, 3, v30',
          's_lshr_b32 s8, s4, 1', 's_lshl_b32 s8, s8, 2', 'v_xor_b32 v31, s8, v31']
    for mb in range(4): c += [f'v_xor_b32 v32, {mb}, v31', f'v_lshl_add_u32 v{6+mb}, v32, 5, v30', f'v_mov_b32 v{12+mb}, v{6+mb}']
    c += ['s_lshl_b32 s8, s7, 12', 'v_add_u32 v10, s8, v2', 'v_mov_b32 v16, v10']
    c += [Wt(vm={'ALL'}, lg={'ALL'}), 's_barrier', 's_cmp_eq_u32 s4, 0', 's_cbranch_scc1 L_sigB', 'L_sigB_ret:']
    c += stamp(15)
    if STOP == 'att': c += ['s_endpgm']
    c += ['s_sub_u32 s8, 15, s65', 's_min_u32 s8, s8, s65', 's_lshl_b32 s8, s8, 8', f's_add_u32 s8, s8, {F_H}', 's_lshl_b32 s9, s65, 8', f's_add_u32 s9, s9, {F_CTX}',
          's_cmp_eq_u32 s64, 3', 's_cselect_b32 s78, s8, s9', 'v_and_b32 v33, 31, v1', 'v_lshlrev_b32 v33, 2, v33']
    for part in range(2):
        c += ['s_mov_b32 s68, 0']
        if part == 1: c += stamp(16) + ['s_branch L_poll3', 'L_poll3_ret:'] + stamp(17)
        for pair in range(5):
            c += [f's_add_u32 s71, s74, {pair * 32768}']
            for kk in range(2):
                W, A = p3_dma(pair, kk)
                for it in (W if part == 0 else A): c += it
                if part == 0: c += ['s_add_u32 s68, s68, 1']
    c += ['s_mov_b32 s71, s74', 's_mov_b32 s72, 0', 's_mov_b32 s73, 21']
    c += [Wt(vm={('L', 'Z0')}), 's_barrier'] + stamp(18) + p3_reads(0) + [Wt(lg={'ALL'})]
    mf = p3_mf(0, czero=True)
    fill = {g: [] for g in range(16)}
    for n, x in enumerate(p3_reads(1)): fill[n + 1].append(x)
    fill[15].append(p3_w0(1))
    c += gaps(mf, fill)
    return c
def p3_body(w):
    mf = p3_mf(2 * w + 1) + p3_mf(2 * w + 2)
    fill = {g: [] for g in range(32)}
    fill[0] += [Wt(vm={('L', f'Z{w+1}')}, lg={'ALL'}), 's_barrier', 's_add_u32 s72, s72, 32768', 's_cmp_eq_u32 s72, 163840', 's_cselect_b32 s72, 0, s72']
    pre = [f'v_add_u32 v{12+n}, s72, v{6+n}' for n in range(4)] + ['v_add_u32 v16, s72, v10']
    fill[0] += pre[:2]; fill[1] += pre[2:4]; fill[2] += pre[4:]
    R1 = p3_reads(2 * w + 2); R2 = p3_reads(2 * w + 3)
    items = []
    for kk in range(2):
        W, A = p3_dma(w + 5, kk); items += W + A
    for g, x in zip(range(3, 15), R1): fill[g].append(x)
    for g, x in zip(range(16, 28), R2): fill[g].append(x)
    for g, it in zip([1, 2, 15, 28, 29, 30, 31, 31], items):
        for x in it: fill[g].append(x)
    p3_waits(fill, 0, 2 * w + 1); fill[15].append(p3_w0(2 * w + 2)); p3_waits(fill, 16, 2 * w + 2); fill[31].insert(0, p3_w0(2 * w + 3))
    fill[31] = [fill[31][0]] + [I(x) if isinstance(x, str) else x for x in fill[31][1:]]
    fill[31][0].meta['keep'] = True
    c = ['L_p3loop:'] + gaps(mf, fill)
    c += ['s_add_u32 s71, s71, 32768', 's_sub_u32 s3, s71, s74', 's_cmp_eq_u32 s3, 163840', 's_cselect_b32 s71, s74, s71',
          's_sub_u32 s73, s73, 1', 's_cmp_lg_u32 s73, 0', 's_cbranch_scc1 L_p3loop']
    return c
def p3_epi():
    c = stamp(19)
    c += ['s_lshl_b32 s8, s65, 2', 's_add_u32 s8, s8, s66', 's_lshl_b32 s9, s8, 18', f's_add_u32 s9, s9, {PART_OFF}', 's_lshl_b32 s10, s4, 12', 's_add_u32 s9, s9, s10',
          's_lshl_b32 s10, s64, 14', 's_add_u32 s10, s10, s9', 's_lshl_b32 s11, s64, 16', 's_add_u32 s11, s11, s9']
    c += ['s_lshl_b32 s78, s8, 8', f's_add_u32 s78, s78, {F_P3}', 's_lshl_b32 s77, s64, 2', 's_add_u32 s77, s77, s78', 'v_and_b32 v48, 3, v1', 'v_lshlrev_b32 v48, 2, v48']
    for qb in range(4):
        for mb in range(4):
            r = 64 + 16 * qb + 4 * mb
            c.append(I(f'buffer_store_dwordx4 v[{r}:{r+3}], v2, {SWS}, s10 offen offset:{mb*1024} sc1', tok='PART'))
        c += ['s_add_u32 s10, s10, 65536']
    c += srd(44, pX, 0x200000) + srd(48, pB2, 1024) + srd(60, pOUT, 0x200000)
    c += ['s_lshl_b32 s12, s65, 7', 's_lshl_b32 s13, s7, 6', 's_add_u32 s12, s12, s13', 's_lshl_b32 s13, s64, 4', 's_add_u32 s12, s12, s13', 's_lshl_b32 s12, s12, 10',
          's_lshl_b32 s13, s66, 8', 's_lshr_b32 s14, s4, 1', 's_lshl_b32 s14, s14, 7', 's_add_u32 s13, s13, s14', 's_add_u32 s12, s12, s13',
          'v_lshlrev_b32 v30, 3, v28', 'v_lshl_add_u32 v31, v29, 10, v30']
    for mb in range(4):
        c += [f'buffer_load_dwordx2 v[{32+2*mb}:{33+2*mb}], v31, {SA}, s12 offen offset:{mb*32}', f'buffer_load_dwordx2 v[{40+2*mb}:{41+2*mb}], v30, {SB}, s13 offen offset:{mb*32}']
    c += [Wt(vm={('L', 'PART')}), 's_barrier', 's_cmp_eq_u32 s4, 0', 's_cbranch_scc1 L_sig3', 'L_sig3_ret:'] + stamp(20) + ['s_branch L_poll4', 'L_poll4_ret:'] + stamp(21)
    for src in range(4):
        for mb in range(4):
            r = 128 + 16 * src + 4 * mb
            c += [f'buffer_load_dwordx4 v[{r}:{r+3}], v2, {SWS}, s11 offen offset:{mb*1024} sc1']
        c += ['s_add_u32 s11, s11, 16384']
    c += [Wt(vm=rs('v', 32, 16))]
    for mb in range(4):
        for j in range(2):
            c += [f'v_lshlrev_b32 v{64+4*mb+2*j}, 16, v{32+2*mb+j}', f'v_and_b32 v{65+4*mb+2*j}, 0xffff0000, v{32+2*mb+j}',
                  f'v_lshlrev_b32 v{80+4*mb+2*j}, 16, v{40+2*mb+j}', f'v_and_b32 v{81+4*mb+2*j}, 0xffff0000, v{40+2*mb+j}']
    c += [Wt(vm=rs('v', 128, 32))]
    for n in range(16): c += [f'v_add_f32 v{128+n}, v{128+n}, v{144+n}']
    c += [Wt(vm=rs('v', 160, 16))]
    for n in range(16): c += [f'v_add_f32 v{128+n}, v{128+n}, v{160+n}']
    c += [Wt(vm=rs('v', 176, 16))]
    for n in range(16): c += [f'v_add_f32 v{176+n}, v{176+n}, v{80+n}']
    for n in range(16): c += [f'v_mul_f32 v{144+n}, {f2u(-LOG2E)}, v{176+n}']
    for n in range(16): c += [f'v_exp_f32 v{144+n}, v{144+n}']
    for n in range(16): c += [f'v_add_f32 v{144+n}, 1.0, v{144+n}']
    for n in range(16): c += [f'v_rcp_f32 v{144+n}, v{144+n}']
    for n in range(16): c += [f'v_mul_f32 v{144+n}, v{144+n}, v{176+n}']
    for n in range(16): c += [f'v_fmac_f32 v{64+n}, v{128+n}, v{144+n}']
    for mb in range(4):
        c += [f'v_cvt_pk_bf16_f32 v{32+2*mb}, v{64+4*mb}, v{65+4*mb}', f'v_cvt_pk_bf16_f32 v{33+2*mb}, v{66+4*mb}, v{67+4*mb}',
              f'buffer_store_dwordx2 v[{32+2*mb}:{33+2*mb}], v31, {SC}, s12 offen offset:{mb*32}']
    c += stamp(22) + ['L_end:', 's_endpgm']
    return c

def build():
    b0 = blk('p0', p0())
    tr_p1 = {}
    for wc in range(2):
        t = [blk(f'p1pre{wc}', p1_pre(wc))]
        blk(f'p1lab{wc}', [f'L_p1loop_{wc}:'])
        for q in range(4): P.add(f'p1k{wc}_{q}', p1_kstep(q, wc, False))
        P.add(f'p1be{wc}', p1_backedge(wc))
        for k in range(12):
            t.append(P.inst(f'p1k{wc}_{k&3}', p1_kstep(k, wc, False)))
            if k & 3 == 3: t.append(P.inst(f'p1be{wc}', p1_backedge(wc)))
        for k in range(12, 16): t.append(blk(f'p1k{wc}_{k}', p1_kstep(k, wc, True)))
        if wc == 0: blk('p1j', ['s_branch L_p1_done'])
        tr_p1[wc] = t
    mid = [blk('trans12', trans12())]
    for k in range(16): mid.append(blk(f'p2a{k}', p2a_kstep(k)))
    mid.append(blk('p2aepi', p2a_epi()))
    if STOP == 'p2a': blk('stop', ['s_waitcnt vmcnt(0)', 's_endpgm'])
    sigA = [I('s_lshl_b32 s3, s4, 1', keep=True), 's_sub_u32 s3, s91, s3', 's_cmp_eq_u32 s3, 1', 's_cbranch_scc1 L_sigA', 'L_sigA_ret:']
    def first(g0, tile): return att_iter(0, g0, pv=False, site='first', extra_need=({('L', 'H'), ('L', 'CTX0')} if tile else ()), post_bar=sigA) + [I('s_cmp_eq_u32 s90, 0'), I('s_cbranch_scc1 L_last')]
    def mid1(t, g0): return [I('L_loop:')] + att_iter(t, g0, site='mid1') + [I('s_sub_u32 s90, s90, 1'), I('s_cmp_eq_u32 s90, 0'), I('s_cbranch_scc1 L_mask0'), I('L_mask0_ret:')]
    def mid0(t, g0): return att_iter(t, g0, site='mid0') + [I('s_cmp_lg_u32 s90, 0'), I('s_cbranch_scc1 L_loop')]
    def last(t, g0): return [I('L_last:'), frag_read('V', t - 1, 1, 3, t, g0), I('s_nop 3')] + [I(x) for x in mask_ops(1, 1)] + [Wt(lg=rs('v', FR(1), 4))] + att_iter(t, g0, qk=False, nxt_qk=False, site='last')
    P.add('pre', att_pre(0)); P.add('first', first(0, 0)); P.add('mid1', mid1(1, 0)); P.add('mid0', mid0(2, 0)); P.add('last', last(3, 0))
    P.add('stats', att_stats(0)); P.add('drain', att_drain(4, 0, 0)); P.add('epi0', att_epi(0, 4, 0, 0)); P.add('epi1', att_epi(1, 4, 0, 0)); P.add('next', att_next())
    m0 = ['L_mask0:', 's_nop 3'] + mask_ops(0, 0) + ['s_branch L_mask0_ret']
    mp = ['L_mask_pre:'] + mask_ops(0, 0) + ['s_branch L_mask_pre_ret']
    def tile(n, g0, tl, cc):
        t = []
        pre = P.inst('pre', att_pre(g0)); t.append(pre)
        t.append(P.inst('first', first(g0, tl)))
        it = 1
        while it < n - 1:
            t.append(P.inst('mid1', mid1(it, g0)))
            if it == n - 3: t.append(('mask0', P.canon['mask0']))
            t.append(P.inst('mid0', mid0(it + 1, g0)))
            it += 2
        t.append(P.inst('last', last(n - 1, g0)))
        t += [P.inst('stats', att_stats(tl)), P.inst('drain', att_drain(n, g0, tl)), P.inst(f'epi{cc}', att_epi(cc, n, g0, tl)), P.inst('next', att_next())]
        return t
    p3 = [blk('p3pre', p3_pre())]
    P.add('p3body', p3_body(0))
    for w in range(21): p3.append(P.inst('p3body', p3_body(w)))
    p3.append(blk('p3epi', p3_epi()))
    P.add('mask0', m0); P.add('maskpre', mp); P.add('rare0', rare(0)); P.add('rare1', rare(1))
    ool = []
    ool += ['L_zero:'] + [f'v_mov_b32 v{40+j}, 0' for j in range(4)] + ['s_lshl_b32 s8, s4, 10', f's_add_u32 s8, s8, {FL_OFF}']
    for j in range(9): ool += [f'buffer_store_dwordx4 v[40:43], v2, {SWS}, s8 offen sc1', 's_add_u32 s8, s8, 4096']
    ool += ['s_waitcnt vmcnt(0)', 's_lshl_b32 s8, s4, 2', 'v_mov_b32 v3, 1', f'buffer_store_dword v3, off, {SDBG}, s8 sc1', 's_branch L_zero_ret']
    for wc in range(2):
        ool += [f'L_sigxn_{wc}:', 'v_cmp_ne_u32 vcc, 0, v3', 's_cmp_eq_u64 vcc, -1', f's_cbranch_scc1 L_pollz_{wc}_ret'] + poll_stub(f'L_pollz_{wc}', 'v35', '0', SDBG)
        ool += sig_stub(f'L_pollz_{wc}_ret', f'L_sigxn_ret_{wc}', ['s_lshr_b32 s8, s2, 4', 's_lshl_b32 s8, s8, 8', 's_and_b32 s9, s2, 15', 's_lshl_b32 s9, s9, 2', 's_add_u32 s8, s8, s9', f's_add_u32 s8, s8, {F_XN}'], ['s8'])
        ool += poll_stub(f'L_pollxn_{wc}', 'v35', 's78')
    ool += sig_stub('L_sigkv', 'L_sigkv_ret', ['s_lshl_b32 s8, s5, 8', 's_lshl_b32 s9, s6, 2', 's_add_u32 s8, s8, s9', f's_add_u32 s8, s8, {F_KV}'], ['s8'])
    ool += poll_stub('L_pollkv', 'v39', 's78')
    ool += sig_stub('L_sigA', 'L_sigA_ret', ['s_lshl_b32 s9, s5, 2', 's_lshl_b32 s8, s96, 8', 's_add_u32 s8, s8, s9', f's_add_u32 s8, s8, {F_CTX}', 's_lshl_b32 s10, s6, 8', 's_add_u32 s9, s9, s10', f's_add_u32 s9, s9, {F_H}'], ['s8', 's9'])
    ool += sig_stub('L_sigB', 'L_sigB_ret', ['s_lshl_b32 s9, s5, 2', 's_lshl_b32 s8, s92, 8', 's_add_u32 s8, s8, s9', f's_add_u32 s8, s8, {F_CTX}'], ['s8'])
    ool += poll_stub('L_poll3', 'v33', 's78')
    ool += sig_stub('L_sig3', 'L_sig3_ret', [], ['s77'])
    ool += poll_stub('L_poll4', 'v48', 's78')
    P.add('ool', ool)
    traces = []
    for wc, nA, nB in ((0, 6, 2), (1, 8, 4), (0, 4, 6), (1, 6, 6)):
        traces.append([b0] + tr_p1[wc] + mid + tile(nA, 0, 0, wc) + tile(nB, nA, 1, wc) + p3)
    P.resolve(traces)
    errs = P.check(traces)
    errs += P.check([[('rare0', P.canon['rare0'])], [('rare1', P.canon['rare1'])], [('maskpre', P.canon['maskpre'])], [('ool', P.canon['ool'])]])
    return errs

errs = build()
seen = set()
for e in errs:
    k = e.split(' ', 1)[1]
    if k not in seen:
        seen.add(k); print('ERR', e)
hdr = open('recurrent_scan__compressed_kv_cla__dense_activation_gelu__prompt.s.ref').read().split('; Override')[0]
s = hdr + '; @launch grid=(256,1,1) block=(256,1,1) lds=163840\n'
s += f'.amdgcn_target "amdgcn-amd-amdhsa--gfx950"\n.text\n.globl {NAME}\n.p2align 8\n.type {NAME},@function\n{NAME}:\n'
s += P.text()
s += f'''.section .rodata,"a"
.p2align 6
.amdhsa_kernel {NAME}
  .amdhsa_next_free_vgpr 512
  .amdhsa_next_free_sgpr 102
  .amdhsa_accum_offset 256
  .amdhsa_group_segment_fixed_size 0
  .amdhsa_kernarg_size 112
  .amdhsa_user_sgpr_count 2
  .amdhsa_user_sgpr_kernarg_segment_ptr 1
  .amdhsa_system_sgpr_workgroup_id_x 1
.end_amdhsa_kernel
'''
open(OUT, 'w').write(s)
print('written', OUT, len(s), 'bytes;', len(seen), 'errors')
```
